```python
import torch

def _softmax(x, axis=-1):
    return torch.softmax(x, dim=axis)
def _gelu(x):
    return torch.nn.functional.gelu(x, approximate="tanh")
def _silu(x):
    return torch.nn.functional.silu(x)
def _sigmoid(x):
    return torch.sigmoid(x)
def _layernorm(x, axis=-1, eps=1e-5):
    m = x.mean(dim=axis, keepdim=True)
    v = x.var(dim=axis, keepdim=True, unbiased=False)
    return (x - m) / torch.sqrt(v + eps)
def _scatter_add(tgt, idx, src, axis=0):
    return tgt.clone().index_add_(axis, idx, src)
def _segment_sum(src, seg, n):
    out = torch.zeros((n,) + src.shape[1:], dtype=src.dtype)
    return out.index_add_(0, seg, src)
def _pad(x, pw):
    flat = tuple(v for pair in reversed(pw) for v in pair)
    return torch.nn.functional.pad(x, flat)

kernel_name = 'sequential_preLN__mha_block__mixer_s_mlp__prompt'

def setup_inputs():

    _w = (lambda a: (lambda t: t.to(torch.bfloat16) if t.is_floating_point() else t)(torch.as_tensor(a)))
    def _A_setup():
        B, S, D, H = 1, 2048, 512, 32
        return {
            "x": _w((lambda *s: torch.randn(*s, dtype=torch.bfloat16) * 0.05)(B, S, D)),
            "wqkv": _w((lambda *s: torch.randn(*s, dtype=torch.bfloat16) * 0.05)(D, 3 * D)),
            "wo": _w((lambda *s: torch.randn(*s, dtype=torch.bfloat16) * 0.05)(D, D)),
        }
    _A_in = _A_setup()

    def _B_setup():
        B, S, D, F = 1, 2048, 512, 1376
        return {
            "x":  _w((lambda *s: torch.randn(*s, dtype=torch.bfloat16) * 0.05)(B, S, D)),
            "w1": _w((lambda *s: torch.randn(*s, dtype=torch.bfloat16) * 3.2)(D, D) * (D ** -0.5)),
            "w2": _w((lambda *s: torch.randn(*s, dtype=torch.bfloat16) * 3.2)(D, D) * (D ** -0.5)),
            "w3": _w((lambda *s: torch.randn(*s, dtype=torch.bfloat16) * 3.2)(D, F) * (D ** -0.5)),
            "w4": _w((lambda *s: torch.randn(*s, dtype=torch.bfloat16) * 3.2)(F, D) * (F ** -0.5)),
        }
    _B_in = _B_setup()

    return {
        "A_x": _A_in["x"],
        "A_wqkv": _A_in["wqkv"],
        "A_wo": _A_in["wo"],
        "B_x": _B_in["x"],
        "B_w1": _B_in["w1"],
        "B_w2": _B_in["w2"],
        "B_w3": _B_in["w3"],
        "B_w4": _B_in["w4"],
    }

def reference(A_x, A_wqkv, A_wo, B_x, B_w1, B_w2, B_w3, B_w4):
    def _A_ref(x, wqkv, wo):
        B, S, D = x.shape
        H = 32
        Dh = D // H
        qkv = (lambda x, *d: x.permute(*d))((x @ wqkv).reshape(B, S, 3, H, Dh), 2, 0, 3, 1, 4)
        q, k, v = qkv[0], qkv[1], qkv[2]
        scores = torch.einsum("bhqd,bhkd->bhqk", q, k) * (Dh ** -0.5)
        p = _softmax(scores, axis=-1)
        o = torch.einsum("bhqk,bhkd->bhqd", p, v)
        return (lambda x, *d: x.permute(*d))(o, 0, 2, 1, 3).reshape(B, S, D) @ wo

    def _B_ref(x, w1, w2, w3, w4):
        B, S, D = x.shape
        h = _gelu(_layernorm(x, axis=-1) @ w1)
        c = D // 4
        g0 = _pad(h[:, :, 0*c:1*c], ((0, 0), (1, 0), (0, 0)))[:, :S, :]
        g1 = _pad(h[:, :, 1*c:2*c], ((0, 0), (0, 1), (0, 0)))[:, 1:, :]
        g2 = _pad(h[:, :, 2*c:3*c], ((0, 0), (2, 0), (0, 0)))[:, :S, :]
        g3 = _pad(h[:, :, 3*c:   ], ((0, 0), (0, 2), (0, 0)))[:, 2:, :]
        hs = torch.concatenate([g0, g1, g2, g3], axis=-1) @ w2
        x1 = x + hs
        h2 = _gelu(_layernorm(x1, axis=-1) @ w3) @ w4
        return x1 + h2

    x = A_x
    h = x + _A_ref(_layernorm(x, axis=-1), A_wqkv, A_wo)
    h2 = h + _B_ref(_layernorm(h, axis=-1), B_w1, B_w2, B_w3, B_w4)
    return h2
```

```python
import re

TRANS = ("v_exp_f32", "v_log_f32", "v_rcp_f32", "v_rsq_f32", "v_sqrt_f32", "v_sin_f32", "v_cos_f32", "v_rcp_iflag_f32", "v_exp_f16")

def v(b, n=1):
    return f"v{b}" if n == 1 else f"v[{b}:{b+n-1}]"
def a(b, n=1):
    return f"a{b}" if n == 1 else f"a[{b}:{b+n-1}]"
def s(b, n=1):
    return f"s{b}" if n == 1 else f"s[{b}:{b+n-1}]"

_REG = re.compile(r"^(-|abs\()?\s*([vas])(?:(\d+)|\[(\d+):(\d+)\])\)?$")

def regs_of(op):
    op = op.strip()
    if op in ("vcc",): return {("s", "vcc_lo"), ("s", "vcc_hi")}
    if op in ("vcc_lo", "vcc_hi"): return {("s", op)}
    if op == "exec": return {("s", "exec_lo"), ("s", "exec_hi")}
    if op in ("exec_lo", "exec_hi"): return {("s", op)}
    if op == "m0": return {("s", "m0")}
    op2 = op.replace("|", "")
    m = _REG.match(op2)
    if not m: return set()
    k = m.group(2)
    if m.group(3) is not None: return {(k, int(m.group(3)))}
    return {(k, i) for i in range(int(m.group(4)), int(m.group(5)) + 1)}

def split_ops(rest):
    out, depth, cur = [], 0, ""
    for ch in rest:
        if ch in "[(": depth += 1
        if ch in "])": depth -= 1
        if ch == "," and depth == 0:
            out.append(cur.strip()); cur = ""
        else:
            cur += ch
    if cur.strip(): out.append(cur.strip())
    return out

class Ins:
    __slots__ = ("text", "op", "ops", "mods", "rd", "wr", "cls", "passes", "srcc", "srcab", "wide_store_data")
    def __init__(self, text):
        self.text = text
        t = text.split(";")[0].strip()
        parts = t.split(None, 1)
        self.op = parts[0]
        rest = parts[1] if len(parts) > 1 else ""
        ops = split_ops(rest)
        mods = ""
        if ops:
            last = ops[-1].split(None, 1)
            ops[-1] = last[0]
            mods = last[1] if len(last) > 1 else ""
        self.ops, self.mods = ops, mods
        op = self.op
        self.passes = 0; self.srcc = set(); self.srcab = set(); self.wide_store_data = set()
        R = [regs_of(o) for o in ops]
        rd, wr = set(), set()
        if op.startswith("v_mfma") or op.startswith("v_smfmac"):
            self.cls = "mfma"
            self.passes = 8 if "32x32" in op else 4
            wr |= R[0]
            if op.startswith("v_smfmac"):
                self.srcc = set(R[0]); self.srcab = R[1] | R[2] | R[3]
            else:
                self.srcc = set(R[3]); self.srcab = R[1] | R[2]
            rd |= self.srcc | self.srcab
        elif op.startswith("v_"):
            self.cls = "trans" if op.replace("_e32", "").replace("_e64", "") in TRANS else "valu"
            if op.startswith("v_dot"): self.cls = "dot"
            if op.startswith("v_cmpx"):
                wr |= R[0] | regs_of("exec"); [rd.update(x) for x in R[1:]]
            elif op.startswith("v_permlane") and "swap" in op:
                wr |= R[0] | R[1]; rd |= R[0] | R[1]
            elif op.startswith(("v_add_co", "v_sub_co", "v_addc_co", "v_subb_co", "v_subrev_co", "v_mad_u64", "v_div_scale")):
                wr |= R[0] | R[1]; [rd.update(x) for x in R[2:]]
            elif op == "v_nop":
                pass
            else:
                wr |= R[0]; [rd.update(x) for x in R[1:]]
                if op.startswith(("v_fmac", "v_dot2c", "v_pk_fmac", "v_writelane")): rd |= R[0]
                if op.startswith("v_cndmask") and len(ops) == 3: rd |= regs_of("vcc")
        elif op.startswith(("buffer_", "global_", "flat_")):
            self.cls = "vmem"
            is_lds = " lds" in (" " + mods) or "load_lds" in op
            if op in ("buffer_wbl2", "buffer_inv"):
                pass
            elif "store" in op or "atomic" in op:
                [rd.update(x) for x in R]
                data = R[0] if op.startswith("buffer_") else R[1]
                if "x3" in op or "x4" in op: self.wide_store_data = set(data)
                if "atomic" in op and "sc0" in mods: wr |= R[0]
            elif is_lds:
                [rd.update(x) for x in R]; rd |= regs_of("m0")
                self.cls = "vmem_lds"
            else:
                wr |= R[0]; [rd.update(x) for x in R[1:]]
        elif op.startswith("ds_"):
            self.cls = "ds"
            if op.startswith(("ds_write", "ds_add", "ds_max", "ds_min")) and "rtn" not in op:
                [rd.update(x) for x in R]
            else:
                wr |= R[0]; [rd.update(x) for x in R[1:]]
        elif op.startswith("s_"):
            self.cls = "salu"
            if op.startswith(("s_cmp", "s_cbranch", "s_branch", "s_waitcnt", "s_nop", "s_barrier", "s_endpgm", "s_setprio", "s_sleep", "s_bitcmp")):
                [rd.update(x) for x in R]
            elif op.startswith("s_load") or op.startswith("s_memtime") or op.startswith("s_memrealtime"):
                self.cls = "smem"; wr |= R[0]; [rd.update(x) for x in R[1:]]
            else:
                if R: wr |= R[0]
                [rd.update(x) for x in R[1:]]
                if "saveexec" in op: wr |= regs_of("exec"); rd |= regs_of("exec")
        else:
            raise ValueError("unknown instruction: " + text)
        self.rd, self.wr = rd, wr
    def states(self):
        if self.op == "s_nop": return int(self.ops[0], 0) + 1
        return 1

def is_valu(i): return i.cls in ("valu", "trans", "dot")
def vregs(S): return {r for r in S if r[0] in "va"}
def sregs(S): return {r for r in S if r[0] == "s"}

def need(p, c):
    n = 0
    pv = is_valu(p)
    if pv:
        wv = vregs(p.wr); ws = sregs(p.wr)
        if c.cls == "mfma" and wv & c.rd: n = max(n, 2)
        if c.cls == "mfma" and ("s", "exec_lo") in ws: n = max(n, 4)
        if p.cls == "trans" and is_valu(c) and c.cls != "trans" and wv & c.rd: n = max(n, 1)
        if p.cls == "trans" and c.cls in ("vmem", "ds", "vmem_lds") and wv & c.rd: n = max(n, 1)
        if p.cls == "dot" and (wv & (c.rd | c.wr)):
            if not (c.op == p.op and not (wv & (regs_of(c.ops[1]) | regs_of(c.ops[2])))): n = max(n, 3)
        if c.op.startswith("v_permlane") and wv & c.rd: n = max(n, 2)
        if is_valu(c) and ("dpp" in c.mods or "row_" in c.mods or "quad_perm" in c.mods) and wv & c.rd: n = max(n, 2)
        if c.op.startswith(("v_readlane", "v_readfirstlane")) and wv & c.rd: n = max(n, 1)
        if ws:
            if c.cls in ("vmem", "vmem_lds") and ws & c.rd: n = max(n, 5)
            if is_valu(c) and ws & c.rd: n = max(n, 2)
            if c.op.startswith(("v_readlane", "v_writelane")) and ws & c.rd: n = max(n, 4)
            if ("s", "exec_lo") in ws:
                if c.op.startswith(("v_readlane", "v_readfirstlane", "v_writelane", "v_permlane")): n = max(n, 4)
            if c.cls in ("salu", "smem") and ws & c.rd: n = max(n, 1)
        if ("op_sel" in p.mods and not p.op.startswith("v_pk") or "sdwa" in p.op or "dst_sel" in p.mods) and is_valu(c) and wv & (c.rd | c.wr): n = max(n, 1)
    if p.cls == "mfma":
        D = p.wr
        big = {2: 5, 4: 8, 8: 12, 16: 20}[p.passes]
        if c.cls == "mfma":
            if D & c.srcab: n = max(n, big)
            if D & c.srcc:
                if not (c.srcc == D and c.passes == p.passes): n = max(n, big - 2)
            elif D & c.wr:
                n = max(n, big - 2)
        elif (is_valu(c) or c.cls in ("vmem", "ds", "vmem_lds")) and D & (c.rd | c.wr):
            n = max(n, big)
        if is_valu(c) and p.srcc & c.wr: n = max(n, {2: 1, 4: 3, 8: 7, 16: 15}[p.passes])
    if p.wide_store_data and (p.wide_store_data & c.wr):
        n = max(n, 2 if is_valu(c) or c.cls == "mfma" else 1)
    if p.cls == "salu" and ("s", "m0") in p.wr and c.cls == "vmem_lds": n = max(n, 1)
    return n

MAXD = 21

class Asm:
    def __init__(self):
        self.items = []
    def __call__(self, text):
        for line in text.strip("\n").split("\n"):
            t = line.strip()
            if not t or t.startswith(";"):
                if t: self.items.append(("r", "    " + t))
                continue
            if t.endswith(":") and " " not in t:
                self.items.append(("l", t[:-1]))
            elif t.startswith("."):
                self.items.append(("r", t))
            else:
                self.items.append(("i", Ins(t)))
    def raw(self, text): self.items.append(("r", text))
    def label(self, name): self.items.append(("l", name))

    def _fix_once(self):
        items = self.items
        labels = {it[1]: k for k, it in enumerate(items) if it[0] == "l"}
        br = {}
        for k, it in enumerate(items):
            if it[0] == "i" and it[1].op.startswith(("s_cbranch", "s_branch")):
                br.setdefault(it[1].ops[0], []).append(k)
        def walk_back(k, dist, c, best, seen):
            while k >= 0 and dist < MAXD:
                it = items[k]
                if it[0] == "l":
                    for b in br.get(it[1], []):
                        if (b, dist) not in seen:
                            seen.add((b, dist))
                            best = walk_back(b, dist, c, best, seen)
                elif it[0] == "i":
                    p = it[1]
                    if p.op in ("s_branch", "s_endpgm") and (k, dist) not in seen:
                        return best
                    best = max(best, need(p, c) - dist)
                    dist += p.states()
                elif it[0] == "r" and it[1].startswith(".p2align 8"):
                    return best
                k -= 1
            return best
        for k, it in enumerate(items):
            if it[0] != "i": continue
            short = walk_back(k - 1, 0, it[1], 0, set())
            if short > 0:
                ins = []
                while short > 0:
                    n = min(short, 16)
                    ins.append(("i", Ins(f"s_nop {n-1}")))
                    short -= n
                items[k:k] = ins
                return k
        return -1

    def finalize(self):
        items = self.items
        start = 0
        n = 0
        while True:
            k = self._fix_from(start)
            if k < 0: break
            start = k; n += 1
        return n

    def _fix_from(self, start):
        items = self.items
        br = {}
        for k, it in enumerate(items):
            if it[0] == "i" and it[1].op.startswith(("s_cbranch", "s_branch")):
                br.setdefault(it[1].ops[0], []).append(k)
        def walk_back(k, dist, c, best, seen, entered_by_branch=False):
            first = True
            while k >= 0 and dist < MAXD:
                it = items[k]
                if it[0] == "l":
                    for b in br.get(it[1], []):
                        if (b, dist) not in seen:
                            seen.add((b, dist))
                            best = walk_back(b, dist, c, best, seen, True)
                elif it[0] == "i":
                    p = it[1]
                    if p.op in ("s_branch", "s_endpgm") and not (first and entered_by_branch):
                        return best
                    best = max(best, need(p, c) - dist)
                    dist += p.states()
                elif it[0] == "r" and it[1].startswith(".p2align 8"):
                    return best
                first = False
                k -= 1
            return best
        for k in range(start, len(items)):
            it = items[k]
            if it[0] != "i": continue
            short = walk_back(k - 1, 0, it[1], 0, set())
            if short > 0:
                ins = []
                while short > 0:
                    n = min(short, 16)
                    ins.append(("i", Ins(f"s_nop {n-1}  ; hazard")))
                    short -= n
                items[k:k] = ins
                return k + len(ins)
        return -1

    def text(self):
        out = []
        for kind, x in self.items:
            if kind == "i": out.append("    " + x.text)
            elif kind == "l": out.append(x + ":")
            else: out.append(x)
        return "\n".join(out) + "\n"
```

```python
import struct, sys
from asmlib import *

NAME = "sequential_preLN__mha_block__mixer_s_mlp__prompt"
WQKV=0; WO=0x180000; W1=0x200000; W2=0x280000; W3=0x300000; W4=0x460000
CS=0x5C0000; CS_QKV=CS; CS_W1=CS+0x2000; CS_W3=CS+0x3000
XF=0x600000; QF=0x800000; KF=0xA00000; VF=0xC00000; OF=0xE00000; HF=0x1000000; GF=0x1200000; X1F=0x1400000; UF=0x1600000
SX=0x1C00000; SH=0x1C40000; S1=0x1C80000; WS_END=0x1D00000
OOB=0x40000000
def f2u(x): return struct.unpack("<I", struct.pack("<f", x))[0]
import math
LOG2E = math.log2(math.e)
QSCALE = 0.25 * LOG2E
GC0 = -2.0 * LOG2E * math.sqrt(2.0 / math.pi)
GC1 = GC0 * 0.044715
EPS = 1e-5

class VM:
    def __init__(self, A): self.A = A; self.q = []
    def issue(self, text, tag=None):
        self.A(text); self.q.append(tag)
    def wait(self, *tags):
        last = max(i for i, t in enumerate(self.q) if t in tags)
        n = len(self.q) - 1 - last
        assert n <= 63
        self.A(f"s_waitcnt vmcnt({n})")

def header(A, name):
    A.raw(f".globl {name}\n.p2align 8\n.type {name},@function")
    A.raw(".p2align 8")
    A.label(name)

def descriptor(name, vgpr, sgpr=96, accum=None):
    accum = accum or ((vgpr + 3) // 4 * 4)
    return f""".p2align 6
.amdhsa_kernel {name}
  .amdhsa_next_free_vgpr {vgpr}
  .amdhsa_next_free_sgpr {sgpr}
  .amdhsa_accum_offset {accum}
  .amdhsa_group_segment_fixed_size 0
  .amdhsa_kernarg_size 88
  .amdhsa_user_sgpr_count 2
  .amdhsa_user_sgpr_kernarg_segment_ptr 1
  .amdhsa_system_sgpr_workgroup_id_x 1
.end_amdhsa_kernel
"""

def srd(A, d, lo, hi, nbytes):
    A(f"s_mov_b32 s{d}, s{lo}\ns_mov_b32 s{d+1}, s{hi}\ns_mov_b32 s{d+2}, {nbytes:#x}\ns_mov_b32 s{d+3}, 0x00020000")

def common_prologue(A, nwg, done):
    A(f"s_cmp_ge_u32 s2, {nwg}\ns_cbranch_scc1 {done}")
    A("s_load_dwordx2 s[4:5], s[0:1], 80")
    A("v_lshrrev_b32 v2, 6, v0\nv_and_b32 v1, 63, v0")
    A("v_readfirstlane_b32 s3, v2")
    A("v_and_b32 v3, 31, v0          ; i = lane&31")
    A("v_lshrrev_b32 v4, 5, v1       ; h")
    A("v_lshlrev_b32 v1, 4, v1       ; lane*16")
    A("s_waitcnt lgkmcnt(0)")
    srd(A, 8, 4, 5, WS_END)

def swap_sum_pair(A, a_, b_):
    A(f"v_permlane32_swap_b32 v{a_}, v{b_}\nv_add_f32 v{a_}, v{a_}, v{b_}")

def stats_out(A, vm, pk, tmp, base, s_mt, s_nt):
    A(f"v_mov_b32 v{tmp}, 0\nv_mov_b32 v{tmp+1}, 0")
    for q in range(8):
        A(f"v_dot2_f32_bf16 v{tmp}, v{pk+q}, v5, v{tmp}")
        A(f"v_dot2_f32_bf16 v{tmp+1}, v{pk+q}, v{pk+q}, v{tmp+1}")
    swap_sum_pair(A, tmp, tmp + 1)
    A(f"v_lshlrev_b32 v{tmp+2}, 7, v3\nv_lshl_add_u32 v{tmp+2}, v4, 2, v{tmp+2}")
    A(f"s_lshl_b32 s40, {s_mt}, 12\ns_lshl_b32 s41, {s_nt}, 3\ns_add_u32 s40, s40, s41\ns_add_u32 s40, s40, {base:#x}")
    vm.issue(f"buffer_store_dword v{tmp}, v{tmp+2}, s[8:11], s40 offen")

def gen_prep(A):
    name = "prep_kernel"; header(A, name)
    common_prologue(A, 310, "P_done")
    A("s_load_dwordx16 s[48:63], s[0:1], 0")
    A("v_mov_b32 v5, 0x3f803f80")
    A("s_waitcnt lgkmcnt(0)")
    A("s_cmp_ge_u32 s2, 182\ns_cbranch_scc1 P_x")
    tab = [(0, 50, 3072, 512, WQKV, 131072, 32, CS_QKV), (48, 52, 1024, 512, WO, 131072, 32, 0), (64, 56, 1024, 512, W1, 131072, 32, CS_W1),
           (80, 58, 1024, 512, W2, 131072, 32, 0), (96, 60, 2752, 512, W3, 131072, 32, CS_W3), (139, 62, 1024, 1376, W4, 48771, 86, 0)]
    for idx, (p0, ptr, stride, rows, dst, magic, KS, cs) in enumerate(tab):
        A(f"P_sel{idx}:")
        if idx + 1 < len(tab):
            A(f"s_cmp_ge_u32 s2, {tab[idx+1][0]}\ns_cbranch_scc1 P_sel{idx+1}")
        A(f"s_mov_b32 s12, s{ptr}\ns_mov_b32 s13, s{ptr+1}\ns_mov_b32 s14, {stride*rows:#x}")
        A(f"s_mov_b32 s22, {stride}\ns_mov_b32 s24, {dst:#x}\ns_sub_u32 s25, s2, {p0}\ns_mov_b32 s26, {magic}\ns_mov_b32 s27, {KS}\ns_mov_b32 s28, {cs:#x}")
        if idx + 1 < len(tab): A("s_branch P_go")
    A("P_go:")
    A("s_mov_b32 s15, 0x00020000")
    vm = VM(A)
    A("s_lshl_b32 s23, s22, 2\nv_mul_lo_u32 v6, v4, s23\nv_lshl_add_u32 v6, v3, 1, v6     ; 4h*stride + 2i")
    A("s_lshl_b32 s29, s25, 5\ns_lshl_b32 s30, s3, 2\ns_add_u32 s29, s29, s30      ; f0")
    A("s_mul_i32 s36, s22, 5")
    for i4 in range(4):
        A(f"s_add_u32 s30, s29, {i4}\ns_mul_i32 s31, s30, s26\ns_lshr_b32 s31, s31, 22      ; nt")
        A("s_mul_i32 s32, s31, s27\ns_sub_u32 s32, s30, s32      ; ks")
        A("s_lshl_b32 s33, s22, 4\ns_mul_i32 s33, s33, s32\ns_lshl_b32 s34, s31, 6\ns_add_u32 s33, s33, s34")
        for j in range(8):
            vm.issue(f"buffer_load_ushort v{16+i4*8+j}, v6, s[12:15], s33 offen", ("w", i4))
            if j < 7: A(f"s_add_u32 s33, s33, {'s36' if j == 3 else 's22'}")
    A("v_mov_b32 v7, 0")
    A("s_lshl_b32 s30, s29, 10\ns_add_u32 s30, s30, s24")
    for i4 in range(4):
        vm.wait(("w", i4))
        for q in range(4):
            A(f"v_lshl_or_b32 v{48+i4*4+q}, v{16+i4*8+2*q+1}, 16, v{16+i4*8+2*q}")
        vm.issue(f"buffer_store_dwordx4 v[{48+i4*4}:{48+i4*4+3}], v1, s[8:11], s30 offen offset:{i4*1024}")
        for q in range(4):
            A(f"v_dot2_f32_bf16 v7, v{48+i4*4+q}, v5, v7")
    A("s_cmp_eq_u32 s28, 0\ns_cbranch_scc1 P_done")
    A("v_lshlrev_b32 v8, 2, v0\nds_write_b32 v8, v7\ns_waitcnt lgkmcnt(0)\ns_barrier")
    A("s_cmp_lg_u32 s3, 0\ns_cbranch_scc1 P_done")
    A("v_lshlrev_b32 v8, 2, v3")
    for q in range(16):
        A(f"ds_read_b32 v{16+q}, v8 offset:{q*128}")
    A("s_waitcnt lgkmcnt(0)")
    for q in range(1, 16):
        A(f"v_add_f32 v16, v16, v{16+q}")
    A("s_lshl_b32 s30, s25, 7\ns_add_u32 s30, s30, s28")
    A("buffer_store_dword v16, v8, s[8:11], s30 offen")
    A("s_endpgm")
    A("P_x:")
    vm = VM(A)
    srd(A, 12, 48, 49, 2048 * 1024)
    A("s_sub_u32 s20, s2, 182\ns_lshl_b32 s20, s20, 3\ns_add_u32 s20, s20, s3\ns_lshr_b32 s21, s20, 4      ; mt\ns_and_b32 s22, s20, 15      ; nt")
    A("v_lshlrev_b32 v6, 10, v3\nv_lshl_add_u32 v6, v4, 3, v6")
    A("s_lshl_b32 s23, s21, 15\ns_lshl_b32 s24, s22, 6\ns_add_u32 s23, s23, s24")
    for g in range(4):
        vm.issue(f"buffer_load_dwordx2 v[{16+2*g}:{17+2*g}], v6, s[12:15], s23 offen offset:{g*16}", "x")
    A(f"s_lshl_b32 s23, s21, 15\ns_lshl_b32 s24, s22, 11\ns_add_u32 s23, s23, s24\ns_add_u32 s23, s23, {XF:#x}")
    vm.wait("x")
    vm.issue("buffer_store_dwordx4 v[16:19], v1, s[8:11], s23 offen")
    vm.issue("buffer_store_dwordx4 v[20:23], v1, s[8:11], s23 offen offset:1024")
    stats_out(A, vm, 16, 32, SX, "s21", "s22")
    A("P_done:\ns_endpgm")
    return name, 64

AF, WF, ACC = 64, 128, 192
def stats_in_issue(A, vm, base):
    A("v_lshlrev_b32 v6, 7, v3\nv_lshl_add_u32 v6, v4, 6, v6")
    A(f"s_lshl_b32 s40, s21, 12\ns_add_u32 s40, s40, {base:#x}")
    for q in range(4):
        vm.issue(f"buffer_load_dwordx4 v[{16+4*q}:{19+4*q}], v6, s[8:11], s40 offen offset:{16*q}", "st")

def stats_in_reduce(A, vm):
    vm.wait("st")
    for q in (4, 2, 1):
        for k in range(q):
            A(f"v_pk_add_f32 v[{16+2*k}:{17+2*k}], v[{16+2*k}:{17+2*k}], v[{16+2*(k+q)}:{17+2*(k+q)}]")
    A("v_mov_b32 v18, v16\nv_mov_b32 v19, v17")
    A("v_permlane32_swap_b32 v16, v18\nv_permlane32_swap_b32 v17, v19")
    A("v_add_f32 v16, v16, v18\nv_add_f32 v17, v17, v19")
    A(f"v_mul_f32 v16, {f2u(1/512):#x}, v16\nv_mul_f32 v17, {f2u(1/512):#x}, v17")
    A("v_fma_f32 v17, -v16, v16, v17\nv_max_f32 v17, 0, v17")

def gelu(A, d, n, t):
    for k in range(0, n, 2):
        A(f"v_pk_mul_f32 v[{t+k}:{t+k+1}], v[{d+k}:{d+k+1}], v[{d+k}:{d+k+1}]")
    for k in range(0, n, 2):
        A(f"v_pk_fma_f32 v[{t+k}:{t+k+1}], v[{t+k}:{t+k+1}], v[8:9], v[10:11]")
    for k in range(0, n, 2):
        A(f"v_pk_mul_f32 v[{t+k}:{t+k+1}], v[{t+k}:{t+k+1}], v[{d+k}:{d+k+1}]")
    for k in range(n): A(f"v_exp_f32 v{t+k}, v{t+k}")
    for k in range(0, n, 2):
        A(f"v_pk_add_f32 v[{t+k}:{t+k+1}], v[{t+k}:{t+k+1}], v[12:13]")
    for k in range(n): A(f"v_rcp_f32 v{t+k}, v{t+k}")
    for k in range(0, n, 2):
        A(f"v_pk_mul_f32 v[{d+k}:{d+k+1}], v[{d+k}:{d+k+1}], v[{t+k}:{t+k+1}]")

def unpack(A, src, dst, n=8):
    for q in range(n):
        A(f"v_lshlrev_b32 v{dst+2*q}, 16, v{src+q}\nv_and_b32 v{dst+2*q+1}, 0xffff0000, v{src+q}")

def pack(A, src, dst, n=8):
    for q in range(n):
        A(f"v_cvt_pk_bf16_f32 v{dst+q}, v{src+2*q}, v{src+2*q+1}")

def gen_gemm(A, name, L, a_base, a_ks, w_base, NT, epi, shift=False, vform_from=None):
    header(A, name)
    NB = (NT + 1) // 2
    common_prologue(A, 32 * NB, f"{L}_done")
    steps = (a_ks + 3) // 4
    A("s_and_b32 s16, s2, 7\ns_lshl_b32 s16, s16, 2\ns_lshr_b32 s17, s2, 3\ns_and_b32 s17, s17, 3\ns_add_u32 s16, s16, s17      ; mb")
    A("s_lshr_b32 s17, s2, 5      ; nb")
    A("s_lshr_b32 s18, s3, 1\ns_lshl_b32 s21, s16, 1\ns_add_u32 s21, s21, s18")
    A("s_and_b32 s18, s3, 1\ns_lshl_b32 s22, s17, 1\ns_add_u32 s22, s22, s18")
    A(f"s_mul_i32 s18, s3, {steps*1024}")
    A(f"s_mul_i32 s24, s17, {2*a_ks*1024}\ns_add_u32 s24, s24, s18\ns_add_u32 s24, s24, {w_base:#x}      ; W nt0")
    A(f"s_add_u32 s25, s24, {a_ks*1024}      ; W nt1")
    if not shift:
        A(f"s_mul_i32 s26, s16, {2*a_ks*1024}\ns_add_u32 s26, s26, s18\ns_add_u32 s26, s26, {a_base:#x}      ; A mt0")
        A(f"s_add_u32 s27, s26, {a_ks*1024}")
        va = ["v1", "v1"]
    else:
        A("s_lshr_b32 s28, s3, 1\ns_add_u32 s28, s28, 1\ns_sub_u32 s29, 0, s28\ns_bitcmp1_b32 s3, 0\ns_cselect_b32 s28, s28, s29")
        A("s_lshl_b32 s29, s16, 6\ns_add_u32 s28, s28, s29")
        A(f"s_add_u32 s26, s18, {a_base:#x}\ns_mov_b32 s27, s26")
        for t in range(2):
            A(f"v_add_u32 v7, s28, v3" + (f"\nv_add_u32 v7, 32, v7" if t else ""))
            A(f"v_lshrrev_b32 v{14+t}, 5, v7\nv_lshlrev_b32 v{14+t}, 15, v{14+t}")
            A(f"v_and_b32 v6, 31, v7\nv_lshl_add_u32 v6, v4, 5, v6\nv_lshl_add_u32 v{14+t}, v6, 4, v{14+t}")
            A(f"v_mov_b32 v6, {OOB:#x}\nv_cmp_gt_u32 vcc, 2048, v7\nv_cndmask_b32 v{14+t}, v6, v{14+t}, vcc")
        va = ["v14", "v15"]
    paths = [("", False)] if vform_from is None else [("", False), ("V", True)]
    if vform_from is not None:
        A(f"s_cmp_ge_u32 s17, {vform_from}\ns_cbranch_scc1 {L}_V")
    for sfx, vform in paths:
        if sfx: A(f"{L}_V:")
        vm = VM(A)
        def loads(t):
            slot = t % 8
            so = ["s26", "s27", "s24", "s25"]
            hi = (t // 4) * 4096
            if t % 4 == 0 and t > 0:
                for x in so: A(f"s_add_u32 {x}, {x}, 4096")
                if shift: pass
            if a_ks % 4 and t >= steps - 2:
                A(f"s_mul_i32 s30, s3, {steps}\ns_add_u32 s30, s30, {t}\ns_cmp_lt_u32 s30, {a_ks}")
                for n_, x in enumerate(so): A(f"s_cselect_b32 s{32+n_}, {x}, {OOB:#x}")
                so = ["s32", "s33", "s34", "s35"]
            off = (t % 4) * 1024
            vm.issue(f"buffer_load_dwordx4 {v(AF+slot*8,4)}, {va[0]}, s[8:11], {so[0]} offen offset:{off}", ("k", t))
            vm.issue(f"buffer_load_dwordx4 {v(WF+slot*8,4)}, v1, s[8:11], {so[2]} offen offset:{off}", ("k", t))
            vm.issue(f"buffer_load_dwordx4 {v(AF+slot*8+4,4)}, {va[1]}, s[8:11], {so[1]} offen offset:{off}", ("k", t))
            vm.issue(f"buffer_load_dwordx4 {v(WF+slot*8+4,4)}, v1, s[8:11], {so[3]} offen offset:{off}", ("k", t))
        if shift:
            A("; s26==s27 both advanced below")
        for t in range(min(8, steps)): loads(t)
        epi("issue", A, vm, vform)
        for t in range(steps):
            slot = t % 8
            vm.wait(("k", t))
            for mt in range(2):
                for nt in range(2):
                    acc = ACC + (mt * 2 + nt) * 16
                    c = "0" if t == 0 else v(acc, 16)
                    x, w = v(AF + slot*8 + 4*mt, 4), v(WF + slot*8 + 4*nt, 4)
                    p, q = (x, w) if vform else (w, x)
                    A(f"v_mfma_f32_32x32x16_bf16 {v(acc,16)}, {p}, {q}, {c}")
            if t + 8 < steps: loads(t + 8)
        A("s_lshl_b32 s30, s3, 12\nv_add_u32 v6, s30, v1")
        for o in range(4):
            A(f"s_cmp_eq_u32 s3, {o}\ns_cbranch_scc1 {L}{sfx}_sk{o}")
            for q in range(4):
                A(f"ds_write_b128 v6, {v(ACC+o*16+4*q,4)} offset:{o*16384+q*1024}")
            A(f"s_branch {L}{sfx}_nx{o}")
            A(f"{L}{sfx}_sk{o}:")
            for q in range(16): A(f"v_mov_b32 v{AF+q}, v{ACC+o*16+q}")
            A(f"{L}{sfx}_nx{o}:")
        A("s_waitcnt lgkmcnt(0)\ns_barrier")
        for k in range(1, 4):
            A(f"s_add_u32 s30, s3, {k}\ns_and_b32 s30, s30, 3\ns_lshl_b32 s30, s30, 12\ns_lshl_b32 s31, s3, 14\ns_add_u32 s30, s30, s31\nv_add_u32 v6, s30, v1")
            for q in range(4):
                A(f"ds_read_b128 {v(AF+16*k+4*q,4)}, v6 offset:{q*1024}")
        A("s_waitcnt lgkmcnt(0)")
        for k in range(1, 4):
            for q in range(0, 16, 2):
                A(f"v_pk_add_f32 {v(AF+q,2)}, {v(AF+q,2)}, {v(AF+16*k+q,2)}")
        if NT % 2:
            A(f"s_cmp_ge_u32 s22, {NT}\ns_cbranch_scc1 {L}_done")
        epi("finish", A, vm, vform)
        A("s_endpgm")
    A(f"{L}_done:\ns_endpgm")
    return name, 256

D = AF; T = AF + 16; P = AF + 32; U = AF + 48

def cs_issue(A, vm, base):
    A("v_lshlrev_b32 v7, 4, v4")
    A(f"s_lshl_b32 s41, s22, 7\ns_add_u32 s41, s41, {base:#x}")
    for g in range(4):
        vm.issue(f"buffer_load_dwordx4 v[{32+4*g}:{35+4*g}], v7, s[8:11], s41 offen offset:{32*g}", "cs")

def frag_issue(A, vm, base, reg, tag):
    A(f"s_lshl_b32 s42, s21, 15\ns_lshl_b32 s43, s22, 11\ns_add_u32 s42, s42, s43\ns_add_u32 s42, s42, {base:#x}")
    vm.issue(f"buffer_load_dwordx4 {v(reg,4)}, v1, s[8:11], s42 offen", tag)
    vm.issue(f"buffer_load_dwordx4 {v(reg+4,4)}, v1, s[8:11], s42 offen offset:1024", tag)

def frag_store(A, vm, base, ks_total):
    A(f"s_mul_i32 s42, s21, {ks_total*1024}\ns_lshl_b32 s43, s22, 11\ns_add_u32 s42, s42, s43\ns_add_u32 s42, s42, {base:#x}")
    vm.issue(f"buffer_store_dwordx4 {v(P,4)}, v1, s[8:11], s42 offen")
    vm.issue(f"buffer_store_dwordx4 {v(P+4,4)}, v1, s[8:11], s42 offen offset:1024")

def ln_coef(A, double=False):
    A(f"v_add_f32 v18, {f2u(EPS):#x}, v17\nv_rsq_f32 v24, v18")
    if double:
        A(f"v_mul_f32 v18, v24, v24\nv_mul_f32 v18, v18, v17\nv_add_f32 v18, {f2u(EPS):#x}, v18\nv_rsq_f32 v18, v18\nv_mul_f32 v20, v24, v18")
    else:
        A("v_mov_b32 v20, v24")
    A("v_mul_f32 v22, v16, v20\nv_sub_f32 v22, 0, v22\nv_mov_b32 v21, v20\nv_mov_b32 v23, v22")

def ln_apply(A, vm):
    vm.wait("cs")
    for k in range(0, 16, 2):
        A(f"v_pk_mul_f32 {v(32+k,2)}, {v(32+k,2)}, v[22:23]")
    for k in range(0, 16, 2):
        A(f"v_pk_fma_f32 {v(D+k,2)}, {v(D+k,2)}, v[20:21], {v(32+k,2)}")

def gelu_consts(A):
    A(f"v_mov_b32 v8, {f2u(GC1):#x}\nv_mov_b32 v9, {f2u(GC1):#x}\nv_mov_b32 v10, {f2u(GC0):#x}\nv_mov_b32 v11, {f2u(GC0):#x}\nv_mov_b32 v12, 1.0\nv_mov_b32 v13, 1.0")

def epi_qkv(phase, A, vm, vform):
    if phase == "issue":
        stats_in_issue(A, vm, SX)
        if not vform: cs_issue(A, vm, CS_QKV)
        else:
            A(f"v_lshlrev_b32 v7, 2, v3\ns_lshl_b32 s41, s22, 7\ns_add_u32 s41, s41, {CS_QKV:#x}")
            vm.issue("buffer_load_dword v32, v7, s[8:11], s41 offen", "cs")
        return
    stats_in_reduce(A, vm); ln_coef(A)
    if not vform:
        A(f"s_mov_b32 s44, {f2u(QSCALE):#x}\ns_cmp_lt_u32 s22, 16\ns_cselect_b32 s44, s44, 1.0")
        for r in (20, 21, 22, 23): A(f"v_mul_f32 v{r}, s44, v{r}")
        ln_apply(A, vm); pack(A, D, P)
        A(f"s_lshl_b32 s42, s22, 17\ns_lshl_b32 s43, s21, 10\ns_add_u32 s42, s42, s43\ns_add_u32 s42, s42, {QF:#x}\ns_add_u32 s43, s42, 0x10000")
        A("v_and_b32 v6, 0x33f, v1\nv_and_b32 v7, 64, v1\nv_lshl_or_b32 v6, v7, 1, v6\nv_and_b32 v7, 128, v1\nv_lshrrev_b32 v7, 1, v7\nv_or_b32 v6, v6, v7")
        A("s_cmp_lt_u32 s22, 16\ns_cselect_b64 vcc, -1, 0\nv_cndmask_b32 v6, v6, v1, vcc")
        vm.issue(f"buffer_store_dwordx4 {v(P,4)}, v6, s[8:11], s42 offen")
        vm.issue(f"buffer_store_dwordx4 {v(P+4,4)}, v6, s[8:11], s43 offen")
    else:
        A("s_lshl_b32 s30, s3, 8\ns_add_u32 s30, s30, 0x10000\nv_lshlrev_b32 v6, 2, v3\nv_add_u32 v6, s30, v6")
        A("ds_write_b32 v6, v20\nds_write_b32 v6, v22 offset:128\nv_lshlrev_b32 v6, 4, v4\nv_add_u32 v6, s30, v6\ns_waitcnt lgkmcnt(0)")
        for g in range(4):
            A(f"ds_read_b128 {v(T+4*g,4)}, v6 offset:{32*g}")
            A(f"ds_read_b128 {v(U+4*g,4)}, v6 offset:{128+32*g}")
        vm.wait("cs")
        A("s_waitcnt lgkmcnt(0)")
        for r in range(16):
            A(f"v_mul_f32 v{U+r}, v{U+r}, v32\nv_fma_f32 v{D+r}, v{D+r}, v{T+r}, v{U+r}")
        pack(A, D, P)
        A(f"s_sub_u32 s42, s22, 32\ns_lshl_b32 s42, s42, 17\ns_lshl_b32 s43, s21, 10\ns_add_u32 s42, s42, s43\ns_add_u32 s42, s42, {VF:#x}")
        A("v_lshrrev_b32 v6, 4, v3\nv_lshlrev_b32 v6, 16, v6\nv_and_b32 v7, 15, v3\nv_lshl_add_u32 v6, v7, 4, v6\nv_lshl_add_u32 v6, v4, 8, v6")
        vm.issue(f"buffer_store_dwordx4 {v(P,4)}, v6, s[8:11], s42 offen")
        vm.issue(f"buffer_store_dwordx4 {v(P+4,4)}, v6, s[8:11], s42 offen offset:512")

def epi_wo(phase, A, vm, vform):
    if phase == "issue":
        frag_issue(A, vm, XF, 48, "res"); A("v_mov_b32 v5, 0x3f803f80"); return
    vm.wait("res"); unpack(A, 48, U)
    for k in range(0, 16, 2): A(f"v_pk_add_f32 {v(D+k,2)}, {v(D+k,2)}, {v(U+k,2)}")
    pack(A, D, P); frag_store(A, vm, HF, 32); stats_out(A, vm, P, T, SH, "s21", "s22")

def epi_w1(phase, A, vm, vform):
    if phase == "issue":
        stats_in_issue(A, vm, SH); cs_issue(A, vm, CS_W1); gelu_consts(A); return
    stats_in_reduce(A, vm); ln_coef(A, double=True); ln_apply(A, vm); gelu(A, D, 16, T); pack(A, D, P); frag_store(A, vm, GF, 32)

def epi_w2(phase, A, vm, vform):
    if phase == "issue":
        stats_in_issue(A, vm, SH); frag_issue(A, vm, HF, 48, "res"); A("v_mov_b32 v5, 0x3f803f80"); return
    stats_in_reduce(A, vm); ln_coef(A)
    vm.wait("res"); unpack(A, 48, U)
    for k in range(0, 16, 2): A(f"v_pk_fma_f32 {v(U+k,2)}, {v(U+k,2)}, v[20:21], v[22:23]")
    for k in range(0, 16, 2): A(f"v_pk_add_f32 {v(D+k,2)}, {v(D+k,2)}, {v(U+k,2)}")
    pack(A, D, P); frag_store(A, vm, X1F, 32); stats_out(A, vm, P, T, S1, "s21", "s22")

def epi_w3(phase, A, vm, vform):
    if phase == "issue":
        stats_in_issue(A, vm, S1); cs_issue(A, vm, CS_W3); gelu_consts(A); return
    stats_in_reduce(A, vm); ln_coef(A); ln_apply(A, vm); gelu(A, D, 16, T); pack(A, D, P); frag_store(A, vm, UF, 86)

def epi_w4(phase, A, vm, vform):
    if phase == "issue":
        frag_issue(A, vm, HF, 48, "res"); frag_issue(A, vm, X1F, 56, "res")
        A("s_load_dwordx2 s[6:7], s[0:1], 64"); return
    vm.wait("res"); unpack(A, 48, U); unpack(A, 56, T)
    for k in range(0, 16, 2): A(f"v_pk_add_f32 {v(D+k,2)}, {v(D+k,2)}, {v(T+k,2)}")
    for k in range(0, 16, 2): A(f"v_pk_add_f32 {v(D+k,2)}, {v(D+k,2)}, {v(U+k,2)}")
    pack(A, D, P)
    A("s_waitcnt lgkmcnt(0)")
    srd(A, 12, 6, 7, 2048 * 1024)
    A("v_lshlrev_b32 v6, 10, v3\nv_lshl_add_u32 v6, v4, 3, v6")
    A("s_lshl_b32 s42, s21, 15\ns_lshl_b32 s43, s22, 6\ns_add_u32 s42, s42, s43")
    for g in range(4):
        vm.issue(f"buffer_store_dwordx2 {v(P+2*g,2)}, v6, s[12:15], s42 offen offset:{16*g}")

def gen_attn(A):
    name = "attn_kernel"; header(A, name)
    common_prologue(A, 256, "AT_done")
    Q=8; NEGM=16; O=32; SA=48; SB=64; IDX=7; KR=[80,84]; VR=[88,96]; AK=5; AV=6; TM=104
    A("s_and_b32 s16, s2, 7\ns_lshl_b32 s16, s16, 2\ns_lshr_b32 s17, s2, 3\ns_and_b32 s17, s17, 3\ns_add_u32 s16, s16, s17      ; head")
    A("s_lshr_b32 s17, s2, 5\ns_lshl_b32 s17, s17, 3\ns_add_u32 s17, s17, s3      ; mt")
    A(f"s_lshl_b32 s18, s16, 16\ns_lshl_b32 s19, s17, 10\ns_add_u32 s19, s19, s18\ns_add_u32 s19, s19, {QF:#x}")
    A(f"buffer_load_dwordx4 {v(Q,4)}, v1, s[8:11], s19 offen")
    A(f"s_lshl_b32 s20, s3, 10\ns_add_u32 s21, s18, s20\ns_add_u32 s22, s21, {VF:#x}\ns_add_u32 s21, s21, {KF:#x}")
    for c in range(8):
        A(f"s_add_u32 m0, s20, {c*8192}")
        A(f"buffer_load_dwordx4 v1, s[8:11], s21 offen lds")
        A(f"s_add_u32 m0, s20, {65536 + c*8192}")
        A(f"buffer_load_dwordx4 v1, s[8:11], s22 offen lds")
        if c < 7: A("s_add_u32 s21, s21, 8192\ns_add_u32 s22, s22, 8192")
    A("s_mov_b32 s32, 0x0000ffff\ns_mov_b32 s33, 0x0000ffff")
    A(f"v_mov_b32 v{IDX}, 0xdddd")
    for r in range(16): A(f"v_mov_b32 v{VR[0]+r}, 0x3f803f80")
    A("s_mov_b32 s24, 1\ns_mov_b32 s25, 0       ; pass")
    A("s_waitcnt vmcnt(0)\ns_barrier")
    A("AT_max:")
    A(f"v_mov_b32 v{AK}, v1\nv_mov_b32 v{TM}, 0xff7fffff")
    A("AT_maxloop:")
    A(f"ds_read_b128 {v(KR[0],4)}, v{AK}\nv_add_u32 v{AK}, 1024, v{AK}\ns_waitcnt lgkmcnt(0)")
    A(f"v_mfma_f32_32x32x16_bf16 {v(SA,16)}, {v(KR[0],4)}, {v(Q,4)}, 0")
    for r in range(0, 16, 2): A(f"v_max3_f32 v{TM}, v{SA+r}, v{SA+r+1}, v{TM}")
    A("s_sub_u32 s24, s24, 1\ns_cmp_lg_u32 s24, 0\ns_cbranch_scc1 AT_maxloop")
    A(f"v_mov_b32 v{TM+1}, v{TM}\nv_permlane32_swap_b32 v{TM}, v{TM+1}\nv_max_f32 v{TM}, v{TM}, v{TM+1}")
    for r in range(16): A(f"v_sub_f32 v{NEGM+r}, 0, v{TM}")
    for r in range(16): A(f"v_mov_b32 v{O+r}, 0")
    for r in range(8, 16): A(f"v_mov_b32 v{SB+r}, 0")
    A(f"v_mov_b32 v{AK}, v1\nv_and_b32 v{AV}, 15, v3\nv_lshlrev_b32 v{AV}, 4, v{AV}\nv_lshl_add_u32 v{AV}, v4, 8, v{AV}\nv_add_u32 v{AV}, 0x10000, v{AV}")
    A(f"ds_read_b128 {v(KR[0],4)}, v{AK}\nds_read_b128 {v(KR[1],4)}, v{AK} offset:1024")
    A(f"s_mov_b64 exec, s[32:33]\nds_read_b128 {v(VR[0],4)}, v{AV}\nds_read_b128 {v(VR[0]+4,4)}, v{AV} offset:512\ns_mov_b64 exec, -1")
    A("s_waitcnt lgkmcnt(0)")
    A(f"v_mfma_f32_32x32x16_bf16 {v(SA,16)}, {v(KR[0],4)}, {v(Q,4)}, {v(NEGM,16)}")
    A("s_mov_b32 s26, 8")
    A.raw(".p2align 6")
    A("AT_loop:")
    for t in range(8):
        S, Sn = (SA, SB) if t % 2 == 0 else (SB, SA)
        kn, kn2 = KR[(t+1) % 2], KR[t % 2]
        vc, vn = VR[t % 2], VR[(t+1) % 2]
        ex = lambda a_, b_: [A(f"v_exp_f32 v{S+i}, v{S+i}") for i in range(a_, b_)]
        ex(0, 2)
        A(f"v_smfmac_f32_32x32x32_bf16 {v(O,16)}, {v(vn+4,4)}, {v(Sn+8,8)}, v{IDX}")
        A(f"s_mov_b64 exec, s[32:33]\nds_read_b128 {v(vn,4)}, v{AV} offset:{(t+1)*1024}\nds_read_b128 {v(vn+4,4)}, v{AV} offset:{(t+1)*1024+512}\ns_mov_b64 exec, -1")
        ex(2, 6)
        A("s_waitcnt lgkmcnt(2)")
        A(f"v_mfma_f32_32x32x16_bf16 {v(Sn,16)}, {v(kn,4)}, {v(Q,4)}, {v(NEGM,16)}")
        A(f"ds_read_b128 {v(kn2,4)}, v{AK} offset:{(t+2)*1024}")
        ex(6, 11)
        A(f"v_smfmac_f32_32x32x32_bf16 {v(O,16)}, {v(vc,4)}, {v(S,8)}, v{IDX}")
        ex(11, 16)
    A(f"v_add_u32 v{AK}, 8192, v{AK}\nv_add_u32 v{AV}, 8192, v{AV}")
    A("s_sub_u32 s26, s26, 1\ns_cmp_lg_u32 s26, 0\ns_cbranch_scc1 AT_loop")
    A(f"v_smfmac_f32_32x32x32_bf16 {v(O,16)}, {v(VR[1]+4,4)}, {v(SB+8,8)}, v{IDX}")
    A("s_waitcnt lgkmcnt(0)")
    A("s_cmp_lg_u32 s25, 0\ns_cbranch_scc1 AT_fin")
    A(f"v_mul_f32 v{TM}, 0, v{O}")
    for r in range(1, 8): A(f"v_fma_f32 v{TM}, v{O+r}, 0, v{TM}")
    A(f"v_add_f32 v{TM}, v{TM}, v{O+8}")
    A(f"v_mov_b32 v{TM+1}, {f2u(2.0**100):#x}\nv_cmp_nlt_f32 vcc, v{TM}, v{TM+1}")
    A("s_cbranch_vccz AT_fin")
    A("s_mov_b32 s24, 64\ns_mov_b32 s25, 1\ns_branch AT_max")
    A("AT_fin:")
    A(f"v_rcp_f32 v{TM}, v{O+8}")
    for r in range(8): A(f"v_mul_f32 v{O+r}, v{O+r}, v{TM}")
    pack(A, O, SA, 4)
    A(f"s_lshl_b32 s19, s17, 15\ns_lshl_b32 s20, s16, 10\ns_add_u32 s19, s19, s20\ns_add_u32 s19, s19, {OF:#x}")
    A(f"buffer_store_dwordx4 {v(SA,4)}, v1, s[8:11], s19 offen")
    A("AT_done:\ns_endpgm")
    return name, 112

def build(extra_empty=0):
    A = Asm()
    ks = []
    ks.append(gen_prep(A) + (310, 512, 4096))
    ks.append(gen_gemm(A, "qkv_kernel", "G1", XF, 32, WQKV, 48, epi_qkv, vform_from=16) + (32*24, 256, 65536 + 1024))
    ks.append(gen_attn(A) + (256, 512, 131072 + 4096))
    ks.append(gen_gemm(A, "wo_kernel", "G3", OF, 32, WO, 16, epi_wo) + (256, 256, 65536))
    ks.append(gen_gemm(A, "w1_kernel", "G4", HF, 32, W1, 16, epi_w1) + (256, 256, 65536))
    ks.append(gen_gemm(A, "w2_kernel", "G5", GF, 32, W2, 16, epi_w2, shift=True) + (256, 256, 65536))
    ks.append(gen_gemm(A, "w3_kernel", "G6", X1F, 32, W3, 43, epi_w3) + (32*22, 256, 65536))
    ks.append(gen_gemm(A, "w4_kernel", "G7", UF, 86, W4, 16, epi_w4) + (256, 256, 65536))
    launches = [(n, g, b, l) for n, _, g, b, l in ks]
    if extra_empty:
        header(A, "empty_kernel"); A("s_endpgm"); ks.append(("empty_kernel", 8, 256, 256, 0))
        launches += [("empty_kernel", 256, 256, 0)] * extra_empty
    A.finalize()
    out = "; generated by dev/gen1.py\n"
    for n, g, b, l in launches:
        out += f"; @launch kernel={n} grid=({g},1,1) block=({b},1,1) lds={l}\n"
    out += '.amdgcn_target "amdgcn-amd-amdhsa--gfx950"\n.text\n' + A.text()
    out += '.section .rodata,"a"\n'
    for k in ks: out += descriptor(k[0], k[1])
    return out

if __name__ == "__main__":
    dst = sys.argv[1] if len(sys.argv) > 1 else f"cdna_kernels/{NAME}.s"
    extra = int(sys.argv[2]) if len(sys.argv) > 2 else 0
    open(dst, "w").write(build(extra))
```

```python
import struct, sys
from asmlib import *

NAME = "sequential_preLN__mha_block__mixer_s_mlp__prompt"
WQKV=0; WO=0x180000; W1=0x200000; W2=0x280000; W3=0x300000; W4=0x460000
CS=0x5C0000; CS_QKV=CS; CS_W1=CS+0x2000; CS_W3=CS+0x3000
XF=0x600000; QF=0x800000; KF=0xA00000; VF=0xC00000; OF=0xE00000; HF=0x1000000; GF=0x1200000; X1F=0x1400000; UF=0x1600000
SX=0x1C00000; SH=0x1C40000; S1=0x1C80000; WS_END=0x1D00000
OOB=0x40000000
def f2u(x): return struct.unpack("<I", struct.pack("<f", x))[0]
import math
LOG2E = math.log2(math.e)
QSCALE = 0.25 * LOG2E
GC0 = -2.0 * LOG2E * math.sqrt(2.0 / math.pi)
GC1 = GC0 * 0.044715
EPS = 1e-5

PREP_HOOK = None
class VM:
    def __init__(self, A): self.A = A; self.q = []
    def issue(self, text, tag=None):
        self.A(text); self.q.append(tag)
    def wait(self, *tags):
        last = max(i for i, t in enumerate(self.q) if t in tags)
        n = len(self.q) - 1 - last
        assert n <= 63
        self.A(f"s_waitcnt vmcnt({n})")

def header(A, name):
    A.raw(f".globl {name}\n.p2align 8\n.type {name},@function")
    A.raw(".p2align 8")
    A.label(name)

def descriptor(name, vgpr, sgpr=96, accum=None):
    accum = accum or ((vgpr + 3) // 4 * 4)
    return f""".p2align 6
.amdhsa_kernel {name}
  .amdhsa_next_free_vgpr {vgpr}
  .amdhsa_next_free_sgpr {sgpr}
  .amdhsa_accum_offset {accum}
  .amdhsa_group_segment_fixed_size 0
  .amdhsa_kernarg_size 88
  .amdhsa_user_sgpr_count 2
  .amdhsa_user_sgpr_kernarg_segment_ptr 1
  .amdhsa_system_sgpr_workgroup_id_x 1
.end_amdhsa_kernel
"""

def srd(A, d, lo, hi, nbytes):
    A(f"s_mov_b32 s{d}, s{lo}\ns_mov_b32 s{d+1}, s{hi}\ns_mov_b32 s{d+2}, {nbytes:#x}\ns_mov_b32 s{d+3}, 0x00020000")

def common_prologue(A, nwg, done):
    A(f"s_cmp_ge_u32 s2, {nwg}\ns_cbranch_scc1 {done}")
    A("s_load_dwordx2 s[4:5], s[0:1], 80")
    A("v_lshrrev_b32 v2, 6, v0\nv_and_b32 v1, 63, v0")
    A("v_readfirstlane_b32 s3, v2")
    A("v_and_b32 v3, 31, v0          ; i = lane&31")
    A("v_lshrrev_b32 v4, 5, v1       ; h")
    A("v_lshlrev_b32 v1, 4, v1       ; lane*16")
    A("s_waitcnt lgkmcnt(0)")
    srd(A, 8, 4, 5, WS_END)
    A("; @stamp 0")

def swap_sum_pair(A, a_, b_):
    A(f"v_permlane32_swap_b32 v{a_}, v{b_}\nv_add_f32 v{a_}, v{a_}, v{b_}")

def stats_out(A, vm, pk, tmp, base, s_mt, s_nt):
    A(f"v_mov_b32 v{tmp}, 0\nv_mov_b32 v{tmp+1}, 0")
    for q in range(8):
        A(f"v_dot2_f32_bf16 v{tmp}, v{pk+q}, v5, v{tmp}")
        A(f"v_dot2_f32_bf16 v{tmp+1}, v{pk+q}, v{pk+q}, v{tmp+1}")
    swap_sum_pair(A, tmp, tmp + 1)
    A(f"v_lshlrev_b32 v{tmp+2}, 7, v3\nv_lshl_add_u32 v{tmp+2}, v4, 2, v{tmp+2}")
    A(f"s_lshl_b32 s40, {s_mt}, 12\ns_lshl_b32 s41, {s_nt}, 3\ns_add_u32 s40, s40, s41\ns_add_u32 s40, s40, {base:#x}")
    vm.issue(f"buffer_store_dword v{tmp}, v{tmp+2}, s[8:11], s40 offen")

def gen_prep(A):
    name = "prep_kernel"; header(A, name)
    common_prologue(A, 310, "P_done")
    A("s_load_dwordx16 s[48:63], s[0:1], 0")
    A("v_mov_b32 v5, 0x3f803f80")
    A("s_waitcnt lgkmcnt(0)")
    A("s_cmp_ge_u32 s2, 182\ns_cbranch_scc1 P_x")
    tab = [(0, 50, 3072, 512, WQKV, 131072, 32, CS_QKV), (48, 52, 1024, 512, WO, 131072, 32, 0), (64, 56, 1024, 512, W1, 131072, 32, CS_W1),
           (80, 58, 1024, 512, W2, 131072, 32, 0), (96, 60, 2752, 512, W3, 131072, 32, CS_W3), (139, 62, 1024, 1376, W4, 48771, 86, 0)]
    for idx, (p0, ptr, stride, rows, dst, magic, KS, cs) in enumerate(tab):
        A(f"P_sel{idx}:")
        if idx + 1 < len(tab):
            A(f"s_cmp_ge_u32 s2, {tab[idx+1][0]}\ns_cbranch_scc1 P_sel{idx+1}")
        A(f"s_mov_b32 s12, s{ptr}\ns_mov_b32 s13, s{ptr+1}\ns_mov_b32 s14, {stride*rows:#x}")
        A(f"s_mov_b32 s22, {stride}\ns_mov_b32 s24, {dst:#x}\ns_sub_u32 s25, s2, {p0}\ns_mov_b32 s26, {magic}\ns_mov_b32 s27, {KS}\ns_mov_b32 s28, {cs:#x}")
        if idx + 1 < len(tab): A("s_branch P_go")
    A("P_go:")
    A("s_mov_b32 s15, 0x00020000")
    vm = VM(A)
    A("s_lshl_b32 s23, s22, 2\nv_mul_lo_u32 v6, v4, s23\nv_lshl_add_u32 v6, v3, 1, v6     ; 4h*stride + 2i")
    A("s_lshl_b32 s29, s25, 5\ns_lshl_b32 s30, s3, 2\ns_add_u32 s29, s29, s30      ; f0")
    A("s_mul_i32 s36, s22, 5")
    for i4 in range(4):
        A(f"s_add_u32 s30, s29, {i4}\ns_mul_i32 s31, s30, s26\ns_lshr_b32 s31, s31, 22      ; nt")
        A("s_mul_i32 s32, s31, s27\ns_sub_u32 s32, s30, s32      ; ks")
        A("s_lshl_b32 s33, s22, 4\ns_mul_i32 s33, s33, s32\ns_lshl_b32 s34, s31, 6\ns_add_u32 s33, s33, s34")
        for j in range(8):
            vm.issue(f"buffer_load_ushort v{16+i4*8+j}, v6, s[12:15], s33 offen", ("w", i4))
            if j < 7: A(f"s_add_u32 s33, s33, {'s36' if j == 3 else 's22'}")
    A("v_mov_b32 v7, 0")
    A("s_lshl_b32 s30, s29, 10\ns_add_u32 s30, s30, s24")
    for i4 in range(4):
        vm.wait(("w", i4))
        for q in range(4):
            A(f"v_lshl_or_b32 v{48+i4*4+q}, v{16+i4*8+2*q+1}, 16, v{16+i4*8+2*q}")
        vm.issue(f"buffer_store_dwordx4 v[{48+i4*4}:{48+i4*4+3}], v1, s[8:11], s30 offen offset:{i4*1024}")
        for q in range(4):
            A(f"v_dot2_f32_bf16 v7, v{48+i4*4+q}, v5, v7")
    A("s_cmp_eq_u32 s28, 0\ns_cbranch_scc1 P_done")
    A("v_lshlrev_b32 v8, 2, v0\nds_write_b32 v8, v7\ns_waitcnt lgkmcnt(0)\ns_barrier")
    A("s_cmp_lg_u32 s3, 0\ns_cbranch_scc1 P_done")
    A("v_lshlrev_b32 v8, 2, v3")
    for q in range(16):
        A(f"ds_read_b32 v{16+q}, v8 offset:{q*128}")
    A("s_waitcnt lgkmcnt(0)")
    for q in range(1, 16):
        A(f"v_add_f32 v16, v16, v{16+q}")
    A("s_lshl_b32 s30, s25, 7\ns_add_u32 s30, s30, s28")
    A("buffer_store_dword v16, v8, s[8:11], s30 offen")
    A("s_endpgm")
    A("P_x:")
    vm = VM(A)
    srd(A, 12, 48, 49, 2048 * 1024)
    A("s_sub_u32 s20, s2, 182\ns_lshl_b32 s20, s20, 3\ns_add_u32 s20, s20, s3\ns_lshr_b32 s21, s20, 4      ; mt\ns_and_b32 s22, s20, 15      ; nt")
    A("v_lshlrev_b32 v6, 10, v3\nv_lshl_add_u32 v6, v4, 3, v6")
    A("s_lshl_b32 s23, s21, 15\ns_lshl_b32 s24, s22, 6\ns_add_u32 s23, s23, s24")
    for g in range(4):
        vm.issue(f"buffer_load_dwordx2 v[{16+2*g}:{17+2*g}], v6, s[12:15], s23 offen offset:{g*16}", "x")
    A(f"s_lshl_b32 s23, s21, 15\ns_lshl_b32 s24, s22, 11\ns_add_u32 s23, s23, s24\ns_add_u32 s23, s23, {XF:#x}")
    vm.wait("x")
    vm.issue("buffer_store_dwordx4 v[16:19], v1, s[8:11], s23 offen")
    vm.issue("buffer_store_dwordx4 v[20:23], v1, s[8:11], s23 offen offset:1024")
    stats_out(A, vm, 16, 32, SX, "s21", "s22")
    if PREP_HOOK: PREP_HOOK(A)
    A("P_done:\ns_endpgm")
    return name, 64

AF, WF, ACC = 64, 128, 192
def stats_in_issue(A, vm, base):
    A("v_lshlrev_b32 v6, 7, v3\nv_lshl_add_u32 v6, v4, 6, v6")
    A(f"s_lshl_b32 s40, s21, 12\ns_add_u32 s40, s40, {base:#x}")
    for q in range(4):
        vm.issue(f"buffer_load_dwordx4 v[{16+4*q}:{19+4*q}], v6, s[8:11], s40 offen offset:{16*q}", "st")

def stats_in_reduce(A, vm):
    vm.wait("st")
    for q in (4, 2, 1):
        for k in range(q):
            A(f"v_pk_add_f32 v[{16+2*k}:{17+2*k}], v[{16+2*k}:{17+2*k}], v[{16+2*(k+q)}:{17+2*(k+q)}]")
    A("v_mov_b32 v18, v16\nv_mov_b32 v19, v17")
    A("v_permlane32_swap_b32 v16, v18\nv_permlane32_swap_b32 v17, v19")
    A("v_add_f32 v16, v16, v18\nv_add_f32 v17, v17, v19")
    A(f"v_mul_f32 v16, {f2u(1/512):#x}, v16\nv_mul_f32 v17, {f2u(1/512):#x}, v17")
    A("v_fma_f32 v17, -v16, v16, v17\nv_max_f32 v17, 0, v17")

def gelu(A, d, n, t):
    for k in range(0, n, 2):
        A(f"v_pk_mul_f32 v[{t+k}:{t+k+1}], v[{d+k}:{d+k+1}], v[{d+k}:{d+k+1}]")
    for k in range(0, n, 2):
        A(f"v_pk_fma_f32 v[{t+k}:{t+k+1}], v[{t+k}:{t+k+1}], v[8:9], v[10:11]")
    for k in range(0, n, 2):
        A(f"v_pk_mul_f32 v[{t+k}:{t+k+1}], v[{t+k}:{t+k+1}], v[{d+k}:{d+k+1}]")
    for k in range(n): A(f"v_exp_f32 v{t+k}, v{t+k}")
    for k in range(0, n, 2):
        A(f"v_pk_add_f32 v[{t+k}:{t+k+1}], v[{t+k}:{t+k+1}], v[12:13]")
    for k in range(n): A(f"v_rcp_f32 v{t+k}, v{t+k}")
    for k in range(0, n, 2):
        A(f"v_pk_mul_f32 v[{d+k}:{d+k+1}], v[{d+k}:{d+k+1}], v[{t+k}:{t+k+1}]")

def unpack(A, src, dst, n=8):
    for q in range(n):
        A(f"v_lshlrev_b32 v{dst+2*q}, 16, v{src+q}\nv_and_b32 v{dst+2*q+1}, 0xffff0000, v{src+q}")

def pack(A, src, dst, n=8):
    for q in range(n):
        A(f"v_cvt_pk_bf16_f32 v{dst+q}, v{src+2*q}, v{src+2*q+1}")

def gen_gemm(A, name, L, a_base, a_ks, w_base, NT, epi, shift=False, vform_from=None):
    header(A, name)
    NB = (NT + 1) // 2
    common_prologue(A, 32 * NB, f"{L}_done")
    steps = (a_ks + 3) // 4
    A("s_and_b32 s16, s2, 7\ns_lshl_b32 s16, s16, 2\ns_lshr_b32 s17, s2, 3\ns_and_b32 s17, s17, 3\ns_add_u32 s16, s16, s17      ; mb")
    A("s_lshr_b32 s17, s2, 5      ; nb")
    A("s_lshr_b32 s18, s3, 1\ns_lshl_b32 s21, s16, 1\ns_add_u32 s21, s21, s18")
    A("s_and_b32 s18, s3, 1\ns_lshl_b32 s22, s17, 1\ns_add_u32 s22, s22, s18")
    A(f"s_mul_i32 s18, s3, {steps*1024}")
    A(f"s_mul_i32 s24, s17, {2*a_ks*1024}\ns_add_u32 s24, s24, s18\ns_add_u32 s24, s24, {w_base:#x}      ; W nt0")
    A(f"s_add_u32 s25, s24, {a_ks*1024}      ; W nt1")
    if not shift:
        A(f"s_mul_i32 s26, s16, {2*a_ks*1024}\ns_add_u32 s26, s26, s18\ns_add_u32 s26, s26, {a_base:#x}      ; A mt0")
        A(f"s_add_u32 s27, s26, {a_ks*1024}")
        va = ["v1", "v1"]
    else:
        A("s_lshr_b32 s28, s3, 1\ns_add_u32 s28, s28, 1\ns_sub_u32 s29, 0, s28\ns_bitcmp1_b32 s3, 0\ns_cselect_b32 s28, s28, s29")
        A("s_lshl_b32 s29, s16, 6\ns_add_u32 s28, s28, s29")
        A(f"s_add_u32 s26, s18, {a_base:#x}\ns_mov_b32 s27, s26")
        for t in range(2):
            A(f"v_add_u32 v7, s28, v3" + (f"\nv_add_u32 v7, 32, v7" if t else ""))
            A(f"v_lshrrev_b32 v{14+t}, 5, v7\nv_lshlrev_b32 v{14+t}, 15, v{14+t}")
            A(f"v_and_b32 v6, 31, v7\nv_lshl_add_u32 v6, v4, 5, v6\nv_lshl_add_u32 v{14+t}, v6, 4, v{14+t}")
            A(f"v_mov_b32 v6, {OOB:#x}\nv_cmp_gt_u32 vcc, 2048, v7\nv_cndmask_b32 v{14+t}, v6, v{14+t}, vcc")
        va = ["v14", "v15"]
    paths = [("", False)] if vform_from is None else [("", False), ("V", True)]
    if vform_from is not None:
        A(f"s_cmp_ge_u32 s17, {vform_from}\ns_cbranch_scc1 {L}_V")
    for sfx, vform in paths:
        if sfx: A(f"{L}_V:")
        vm = VM(A)
        def loads(t):
            slot = t % 8
            so = ["s26", "s27", "s24", "s25"]
            hi = (t // 4) * 4096
            if t % 4 == 0 and t > 0:
                for x in so: A(f"s_add_u32 {x}, {x}, 4096")
                if shift: pass
            if a_ks % 4 and t >= steps - 2:
                A(f"s_mul_i32 s30, s3, {steps}\ns_add_u32 s30, s30, {t}\ns_cmp_lt_u32 s30, {a_ks}")
                for n_, x in enumerate(so): A(f"s_cselect_b32 s{32+n_}, {x}, {OOB:#x}")
                so = ["s32", "s33", "s34", "s35"]
            off = (t % 4) * 1024
            vm.issue(f"buffer_load_dwordx4 {v(AF+slot*8,4)}, {va[0]}, s[8:11], {so[0]} offen offset:{off}", ("k", t))
            vm.issue(f"buffer_load_dwordx4 {v(WF+slot*8,4)}, v1, s[8:11], {so[2]} offen offset:{off}", ("k", t))
            vm.issue(f"buffer_load_dwordx4 {v(AF+slot*8+4,4)}, {va[1]}, s[8:11], {so[1]} offen offset:{off}", ("k", t))
            vm.issue(f"buffer_load_dwordx4 {v(WF+slot*8+4,4)}, v1, s[8:11], {so[3]} offen offset:{off}", ("k", t))
        if shift:
            A("; s26==s27 both advanced below")
        for t in range(min(8, steps)): loads(t)
        epi("issue", A, vm, vform)
        A("; @stamp 1")
        for t in range(steps):
            slot = t % 8
            vm.wait(("k", t))
            if t == 0: A("; @stamp 2")
            if t == steps - 1: A("; @stamp 3")
            for mt in range(2):
                for nt in range(2):
                    acc = ACC + (mt * 2 + nt) * 16
                    c = "0" if t == 0 else v(acc, 16)
                    x, w = v(AF + slot*8 + 4*mt, 4), v(WF + slot*8 + 4*nt, 4)
                    p, q = (x, w) if vform else (w, x)
                    A(f"v_mfma_f32_32x32x16_bf16 {v(acc,16)}, {p}, {q}, {c}")
            if t + 8 < steps: loads(t + 8)
        A("s_lshl_b32 s30, s3, 12\nv_add_u32 v6, s30, v1")
        for o in range(4):
            A(f"s_cmp_eq_u32 s3, {o}\ns_cbranch_scc1 {L}{sfx}_sk{o}")
            for q in range(4):
                A(f"ds_write_b128 v6, {v(ACC+o*16+4*q,4)} offset:{o*16384+q*1024}")
            A(f"s_branch {L}{sfx}_nx{o}")
            A(f"{L}{sfx}_sk{o}:")
            for q in range(16): A(f"v_mov_b32 v{AF+q}, v{ACC+o*16+q}")
            A(f"{L}{sfx}_nx{o}:")
        A("s_waitcnt lgkmcnt(0)\ns_barrier")
        A("; @stamp 4")
        for k in range(1, 4):
            A(f"s_add_u32 s30, s3, {k}\ns_and_b32 s30, s30, 3\ns_lshl_b32 s30, s30, 12\ns_lshl_b32 s31, s3, 14\ns_add_u32 s30, s30, s31\nv_add_u32 v6, s30, v1")
            for q in range(4):
                A(f"ds_read_b128 {v(AF+16*k+4*q,4)}, v6 offset:{q*1024}")
        A("s_waitcnt lgkmcnt(0)")
        for k in range(1, 4):
            for q in range(0, 16, 2):
                A(f"v_pk_add_f32 {v(AF+q,2)}, {v(AF+q,2)}, {v(AF+16*k+q,2)}")
        if NT % 2:
            A(f"s_cmp_ge_u32 s22, {NT}\ns_cbranch_scc1 {L}_done")
        A("; @stamp 5")
        epi("finish", A, vm, vform)
        A("; @stamp 6")
        A("s_endpgm")
    A(f"{L}_done:\ns_endpgm")
    return name, 256

D = AF; T = AF + 16; P = AF + 32; U = AF + 48

def cs_issue(A, vm, base):
    A("v_lshlrev_b32 v7, 4, v4")
    A(f"s_lshl_b32 s41, s22, 7\ns_add_u32 s41, s41, {base:#x}")
    for g in range(4):
        vm.issue(f"buffer_load_dwordx4 v[{32+4*g}:{35+4*g}], v7, s[8:11], s41 offen offset:{32*g}", "cs")

def frag_issue(A, vm, base, reg, tag):
    A(f"s_lshl_b32 s42, s21, 15\ns_lshl_b32 s43, s22, 11\ns_add_u32 s42, s42, s43\ns_add_u32 s42, s42, {base:#x}")
    vm.issue(f"buffer_load_dwordx4 {v(reg,4)}, v1, s[8:11], s42 offen", tag)
    vm.issue(f"buffer_load_dwordx4 {v(reg+4,4)}, v1, s[8:11], s42 offen offset:1024", tag)

def frag_store(A, vm, base, ks_total):
    A(f"s_mul_i32 s42, s21, {ks_total*1024}\ns_lshl_b32 s43, s22, 11\ns_add_u32 s42, s42, s43\ns_add_u32 s42, s42, {base:#x}")
    vm.issue(f"buffer_store_dwordx4 {v(P,4)}, v1, s[8:11], s42 offen")
    vm.issue(f"buffer_store_dwordx4 {v(P+4,4)}, v1, s[8:11], s42 offen offset:1024")

def ln_coef(A, double=False):
    A(f"v_add_f32 v18, {f2u(EPS):#x}, v17\nv_rsq_f32 v24, v18")
    if double:
        A(f"v_mul_f32 v18, v24, v24\nv_mul_f32 v18, v18, v17\nv_add_f32 v18, {f2u(EPS):#x}, v18\nv_rsq_f32 v18, v18\nv_mul_f32 v20, v24, v18")
    else:
        A("v_mov_b32 v20, v24")
    A("v_mul_f32 v22, v16, v20\nv_sub_f32 v22, 0, v22\nv_mov_b32 v21, v20\nv_mov_b32 v23, v22")

def ln_apply(A, vm):
    vm.wait("cs")
    for k in range(0, 16, 2):
        A(f"v_pk_mul_f32 {v(32+k,2)}, {v(32+k,2)}, v[22:23]")
    for k in range(0, 16, 2):
        A(f"v_pk_fma_f32 {v(D+k,2)}, {v(D+k,2)}, v[20:21], {v(32+k,2)}")

def gelu_consts(A):
    A(f"v_mov_b32 v8, {f2u(GC1):#x}\nv_mov_b32 v9, {f2u(GC1):#x}\nv_mov_b32 v10, {f2u(GC0):#x}\nv_mov_b32 v11, {f2u(GC0):#x}\nv_mov_b32 v12, 1.0\nv_mov_b32 v13, 1.0")

def epi_qkv(phase, A, vm, vform):
    if phase == "issue":
        stats_in_issue(A, vm, SX)
        if not vform: cs_issue(A, vm, CS_QKV)
        else:
            A(f"v_lshlrev_b32 v7, 2, v3\ns_lshl_b32 s41, s22, 7\ns_add_u32 s41, s41, {CS_QKV:#x}")
            vm.issue("buffer_load_dword v32, v7, s[8:11], s41 offen", "cs")
        return
    stats_in_reduce(A, vm); ln_coef(A)
    if not vform:
        A(f"s_mov_b32 s44, {f2u(QSCALE):#x}\ns_cmp_lt_u32 s22, 16\ns_cselect_b32 s44, s44, 1.0")
        for r in (20, 21, 22, 23): A(f"v_mul_f32 v{r}, s44, v{r}")
        ln_apply(A, vm); pack(A, D, P)
        A(f"s_lshl_b32 s42, s22, 17\ns_lshl_b32 s43, s21, 10\ns_add_u32 s42, s42, s43\ns_add_u32 s42, s42, {QF:#x}\ns_add_u32 s43, s42, 0x10000")
        A("v_and_b32 v6, 0x33f, v1\nv_and_b32 v7, 64, v1\nv_lshl_or_b32 v6, v7, 1, v6\nv_and_b32 v7, 128, v1\nv_lshrrev_b32 v7, 1, v7\nv_or_b32 v6, v6, v7")
        A("s_cmp_lt_u32 s22, 16\ns_cselect_b64 vcc, -1, 0\nv_cndmask_b32 v6, v6, v1, vcc")
        vm.issue(f"buffer_store_dwordx4 {v(P,4)}, v6, s[8:11], s42 offen")
        vm.issue(f"buffer_store_dwordx4 {v(P+4,4)}, v6, s[8:11], s43 offen")
    else:
        A("s_lshl_b32 s30, s3, 8\ns_add_u32 s30, s30, 0x10000\nv_lshlrev_b32 v6, 2, v3\nv_add_u32 v6, s30, v6")
        A("ds_write_b32 v6, v20\nds_write_b32 v6, v22 offset:128\nv_lshlrev_b32 v6, 4, v4\nv_add_u32 v6, s30, v6\ns_waitcnt lgkmcnt(0)")
        for g in range(4):
            A(f"ds_read_b128 {v(T+4*g,4)}, v6 offset:{32*g}")
            A(f"ds_read_b128 {v(U+4*g,4)}, v6 offset:{128+32*g}")
        vm.wait("cs")
        A("s_waitcnt lgkmcnt(0)")
        for r in range(16):
            A(f"v_mul_f32 v{U+r}, v{U+r}, v32\nv_fma_f32 v{D+r}, v{D+r}, v{T+r}, v{U+r}")
        pack(A, D, P)
        A(f"s_sub_u32 s42, s22, 32\ns_lshl_b32 s42, s42, 17\ns_lshl_b32 s43, s21, 10\ns_add_u32 s42, s42, s43\ns_add_u32 s42, s42, {VF:#x}")
        A("v_lshrrev_b32 v6, 4, v3\nv_lshlrev_b32 v6, 16, v6\nv_and_b32 v7, 15, v3\nv_lshl_add_u32 v6, v7, 4, v6\nv_lshl_add_u32 v6, v4, 8, v6")
        vm.issue(f"buffer_store_dwordx4 {v(P,4)}, v6, s[8:11], s42 offen")
        vm.issue(f"buffer_store_dwordx4 {v(P+4,4)}, v6, s[8:11], s42 offen offset:512")

def epi_wo(phase, A, vm, vform):
    if phase == "issue":
        frag_issue(A, vm, XF, 48, "res"); A("v_mov_b32 v5, 0x3f803f80"); return
    vm.wait("res"); unpack(A, 48, U)
    for k in range(0, 16, 2): A(f"v_pk_add_f32 {v(D+k,2)}, {v(D+k,2)}, {v(U+k,2)}")
    pack(A, D, P); frag_store(A, vm, HF, 32); stats_out(A, vm, P, T, SH, "s21", "s22")

def epi_w1(phase, A, vm, vform):
    if phase == "issue":
        stats_in_issue(A, vm, SH); cs_issue(A, vm, CS_W1); gelu_consts(A); return
    stats_in_reduce(A, vm); ln_coef(A, double=True); ln_apply(A, vm); gelu(A, D, 16, T); pack(A, D, P); frag_store(A, vm, GF, 32)

def epi_w2(phase, A, vm, vform):
    if phase == "issue":
        stats_in_issue(A, vm, SH); frag_issue(A, vm, HF, 48, "res"); A("v_mov_b32 v5, 0x3f803f80"); return
    stats_in_reduce(A, vm); ln_coef(A)
    vm.wait("res"); unpack(A, 48, U)
    for k in range(0, 16, 2): A(f"v_pk_fma_f32 {v(U+k,2)}, {v(U+k,2)}, v[20:21], v[22:23]")
    for k in range(0, 16, 2): A(f"v_pk_add_f32 {v(D+k,2)}, {v(D+k,2)}, {v(U+k,2)}")
    pack(A, D, P); frag_store(A, vm, X1F, 32); stats_out(A, vm, P, T, S1, "s21", "s22")

def epi_w3(phase, A, vm, vform):
    if phase == "issue":
        stats_in_issue(A, vm, S1); cs_issue(A, vm, CS_W3); gelu_consts(A); return
    stats_in_reduce(A, vm); ln_coef(A); ln_apply(A, vm); gelu(A, D, 16, T); pack(A, D, P); frag_store(A, vm, UF, 86)

def epi_w4(phase, A, vm, vform):
    if phase == "issue":
        frag_issue(A, vm, HF, 48, "res"); frag_issue(A, vm, X1F, 56, "res")
        A("s_load_dwordx2 s[6:7], s[0:1], 64"); return
    vm.wait("res"); unpack(A, 48, U); unpack(A, 56, T)
    for k in range(0, 16, 2): A(f"v_pk_add_f32 {v(D+k,2)}, {v(D+k,2)}, {v(T+k,2)}")
    for k in range(0, 16, 2): A(f"v_pk_add_f32 {v(D+k,2)}, {v(D+k,2)}, {v(U+k,2)}")
    pack(A, D, P)
    A("s_waitcnt lgkmcnt(0)")
    srd(A, 12, 6, 7, 2048 * 1024)
    A("v_lshlrev_b32 v6, 10, v3\nv_lshl_add_u32 v6, v4, 3, v6")
    A("s_lshl_b32 s42, s21, 15\ns_lshl_b32 s43, s22, 6\ns_add_u32 s42, s42, s43")
    for g in range(4):
        vm.issue(f"buffer_store_dwordx2 {v(P+2*g,2)}, v6, s[12:15], s42 offen offset:{16*g}")

def gen_attn(A):
    name = "attn_kernel"; header(A, name)
    common_prologue(A, 256, "AT_done")
    Q=8; NEGM=16; O=32; SA=48; SB=64; IDX=7; KR=[80,84]; VR=[88,96]; AK=5; AV=6; TM=104
    A("s_and_b32 s16, s2, 7\ns_lshl_b32 s16, s16, 2\ns_lshr_b32 s17, s2, 3\ns_and_b32 s17, s17, 3\ns_add_u32 s16, s16, s17      ; head")
    A("s_lshr_b32 s17, s2, 5\ns_lshl_b32 s17, s17, 3\ns_add_u32 s17, s17, s3      ; mt")
    A(f"s_lshl_b32 s18, s16, 16\ns_lshl_b32 s19, s17, 10\ns_add_u32 s19, s19, s18\ns_add_u32 s19, s19, {QF:#x}")
    A(f"buffer_load_dwordx4 {v(Q,4)}, v1, s[8:11], s19 offen")
    A(f"s_lshl_b32 s20, s3, 10\ns_add_u32 s21, s18, s20\ns_add_u32 s22, s21, {VF:#x}\ns_add_u32 s21, s21, {KF:#x}")
    for c in range(8):
        A(f"s_add_u32 m0, s20, {c*8192}")
        A(f"buffer_load_dwordx4 v1, s[8:11], s21 offen lds")
        A(f"s_add_u32 m0, s20, {65536 + c*8192}")
        A(f"buffer_load_dwordx4 v1, s[8:11], s22 offen lds")
        if c < 7: A("s_add_u32 s21, s21, 8192\ns_add_u32 s22, s22, 8192")
    A("s_mov_b32 s32, 0x0000ffff\ns_mov_b32 s33, 0x0000ffff")
    A(f"v_mov_b32 v{IDX}, 0xdddd")
    for r in range(16): A(f"v_mov_b32 v{VR[0]+r}, 0x3f803f80")
    A("s_mov_b32 s24, 1\ns_mov_b32 s25, 0       ; pass")
    A("; @stamp 1")
    A("s_waitcnt vmcnt(0)")
    A("; @stamp 2")
    A("s_barrier")
    A("; @stamp 3")
    A("AT_max:")
    A(f"v_mov_b32 v{AK}, v1\nv_mov_b32 v{TM}, 0xff7fffff")
    A("AT_maxloop:")
    A(f"ds_read_b128 {v(KR[0],4)}, v{AK}\nv_add_u32 v{AK}, 1024, v{AK}\ns_waitcnt lgkmcnt(0)")
    A(f"v_mfma_f32_32x32x16_bf16 {v(SA,16)}, {v(KR[0],4)}, {v(Q,4)}, 0")
    for r in range(0, 16, 2): A(f"v_max3_f32 v{TM}, v{SA+r}, v{SA+r+1}, v{TM}")
    A("s_sub_u32 s24, s24, 1\ns_cmp_lg_u32 s24, 0\ns_cbranch_scc1 AT_maxloop")
    A(f"v_mov_b32 v{TM+1}, v{TM}\nv_permlane32_swap_b32 v{TM}, v{TM+1}\nv_max_f32 v{TM}, v{TM}, v{TM+1}")
    for r in range(16): A(f"v_sub_f32 v{NEGM+r}, 0, v{TM}")
    for r in range(16): A(f"v_mov_b32 v{O+r}, 0")
    for r in range(8, 16): A(f"v_mov_b32 v{SB+r}, 0")
    A(f"v_mov_b32 v{AK}, v1\nv_and_b32 v{AV}, 15, v3\nv_lshlrev_b32 v{AV}, 4, v{AV}\nv_lshl_add_u32 v{AV}, v4, 8, v{AV}\nv_add_u32 v{AV}, 0x10000, v{AV}")
    A(f"ds_read_b128 {v(KR[0],4)}, v{AK}\nds_read_b128 {v(KR[1],4)}, v{AK} offset:1024")
    A(f"s_mov_b64 exec, s[32:33]\nds_read_b128 {v(VR[0],4)}, v{AV}\nds_read_b128 {v(VR[0]+4,4)}, v{AV} offset:512\ns_mov_b64 exec, -1")
    A("s_waitcnt lgkmcnt(0)")
    A(f"v_mfma_f32_32x32x16_bf16 {v(SA,16)}, {v(KR[0],4)}, {v(Q,4)}, {v(NEGM,16)}")
    A("; @stamp 4\n; @cstamp 7\n; @hwid 9")
    A("s_waitcnt lgkmcnt(0)")
    A("s_mov_b32 s26, 8")
    A.raw(".p2align 6")
    A("AT_loop:")
    for t in range(8):
        S, Sn = (SA, SB) if t % 2 == 0 else (SB, SA)
        kn, kn2 = KR[(t+1) % 2], KR[t % 2]
        vc, vn = VR[t % 2], VR[(t+1) % 2]
        ex = lambda a_, b_: [A(f"v_exp_f32 v{S+i}, v{S+i}") for i in range(a_, b_)]
        ex(0, 2)
        A(f"v_smfmac_f32_32x32x32_bf16 {v(O,16)}, {v(vn+4,4)}, {v(Sn+8,8)}, v{IDX}")
        A(f"s_mov_b64 exec, s[32:33]\nds_read_b128 {v(vn,4)}, v{AV} offset:{(t+1)*1024}\nds_read_b128 {v(vn+4,4)}, v{AV} offset:{(t+1)*1024+512}\ns_mov_b64 exec, -1")
        ex(2, 6)
        A("s_waitcnt lgkmcnt(2)")
        A(f"v_mfma_f32_32x32x16_bf16 {v(Sn,16)}, {v(kn,4)}, {v(Q,4)}, {v(NEGM,16)}")
        A(f"ds_read_b128 {v(kn2,4)}, v{AK} offset:{(t+2)*1024}")
        ex(6, 11)
        A(f"v_smfmac_f32_32x32x32_bf16 {v(O,16)}, {v(vc,4)}, {v(S,8)}, v{IDX}")
        ex(11, 16)
    A(f"v_add_u32 v{AK}, 8192, v{AK}\nv_add_u32 v{AV}, 8192, v{AV}")
    A("s_sub_u32 s26, s26, 1\ns_cmp_lg_u32 s26, 0\ns_cbranch_scc1 AT_loop")
    A(f"v_smfmac_f32_32x32x32_bf16 {v(O,16)}, {v(VR[1]+4,4)}, {v(SB+8,8)}, v{IDX}")
    A("s_waitcnt lgkmcnt(0)")
    A("; @stamp 5\n; @cstamp 8")
    A("s_cmp_lg_u32 s25, 0\ns_cbranch_scc1 AT_fin")
    A(f"v_mul_f32 v{TM}, 0, v{O}")
    for r in range(1, 8): A(f"v_fma_f32 v{TM}, v{O+r}, 0, v{TM}")
    A(f"v_add_f32 v{TM}, v{TM}, v{O+8}")
    A(f"v_mov_b32 v{TM+1}, {f2u(2.0**100):#x}\nv_cmp_nlt_f32 vcc, v{TM}, v{TM+1}")
    A("s_cbranch_vccz AT_fin")
    A("s_mov_b32 s24, 64\ns_mov_b32 s25, 1\ns_branch AT_max")
    A("AT_fin:")
    A(f"v_rcp_f32 v{TM}, v{O+8}")
    for r in range(8): A(f"v_mul_f32 v{O+r}, v{O+r}, v{TM}")
    pack(A, O, SA, 4)
    A(f"s_lshl_b32 s19, s17, 15\ns_lshl_b32 s20, s16, 10\ns_add_u32 s19, s19, s20\ns_add_u32 s19, s19, {OF:#x}")
    A(f"buffer_store_dwordx4 {v(SA,4)}, v1, s[8:11], s19 offen")
    A("AT_done:\ns_endpgm")
    return name, 112

def add_profile(A):
    B = Asm(); kidx = -1
    for kind, x in A.items:
        if kind == "l" and x.endswith("_kernel"):
            kidx += 1
            B.items.append((kind, x)); B("s_memrealtime s[90:91]")
            for n in range(10): B(f"s_mov_b32 s{64+2*n}, 0")
        elif kind == "r" and x.strip().startswith("; @stamp"):
            n = int(x.split()[-1]); B(f"s_memrealtime s[{64+2*n}:{65+2*n}]")
        elif kind == "r" and x.strip().startswith("; @cstamp"):
            n = int(x.split()[-1]); B(f"s_memtime s[{64+2*n}:{65+2*n}]")
        elif kind == "r" and x.strip().startswith("; @hwid"):
            n = int(x.split()[-1]); B(f"s_getreg_b32 s{64+2*n}, hwreg(HW_REG_HW_ID)")
        elif kind == "i" and x.op == "s_endpgm":
            B("s_waitcnt vmcnt(0) lgkmcnt(0)\ns_memrealtime s[92:93]\ns_load_dwordx2 s[84:85], s[0:1], 80\ns_mov_b32 s86, 0x10000000\ns_mov_b32 s87, 0x00020000")
            B("s_mov_b64 exec, 1\nv_lshrrev_b32 v0, 6, v0\nv_lshlrev_b32 v0, 6, v0")
            B(f"s_lshl_b32 s88, s2, 10\ns_add_u32 s88, s88, {PROF + kidx*0x100000:#x}\ns_waitcnt lgkmcnt(0)")
            B("v_mov_b32 v4, s90\nv_mov_b32 v15, s92")
            for n in range(10): B(f"v_mov_b32 v{5+n}, s{64+2*n}")
            B("buffer_store_dwordx4 v[4:7], v0, s[84:87], s88 offen\nbuffer_store_dwordx4 v[8:11], v0, s[84:87], s88 offen offset:16\nbuffer_store_dwordx4 v[12:15], v0, s[84:87], s88 offen offset:32\ns_endpgm")
        else:
            B.items.append((kind, x))
    return B
PROF = 0x8000000

def build(extra_empty=0, profile=False):
    A = Asm()
    ks = []
    ks.append(gen_prep(A) + (310, 512, 4096))
    ks.append(gen_gemm(A, "qkv_kernel", "G1", XF, 32, WQKV, 48, epi_qkv, vform_from=16) + (32*24, 256, 65536 + 1024))
    ks.append(gen_attn(A) + (256, 512, 131072 + 4096))
    ks.append(gen_gemm(A, "wo_kernel", "G3", OF, 32, WO, 16, epi_wo) + (256, 256, 65536))
    ks.append(gen_gemm(A, "w1_kernel", "G4", HF, 32, W1, 16, epi_w1) + (256, 256, 65536))
    ks.append(gen_gemm(A, "w2_kernel", "G5", GF, 32, W2, 16, epi_w2, shift=True) + (256, 256, 65536))
    ks.append(gen_gemm(A, "w3_kernel", "G6", X1F, 32, W3, 43, epi_w3) + (32*22, 256, 65536))
    ks.append(gen_gemm(A, "w4_kernel", "G7", UF, 86, W4, 16, epi_w4) + (256, 256, 65536))
    launches = [(n, g, b, l) for n, _, g, b, l in ks]
    if extra_empty:
        header(A, "empty_kernel"); A("s_endpgm"); ks.append(("empty_kernel", 8, 256, 256, 0))
        launches += [("empty_kernel", 256, 256, 0)] * extra_empty
    if profile: A = add_profile(A)
    A.finalize()
    out = "; generated by dev/gen1.py\n"
    for n, g, b, l in launches:
        out += f"; @launch kernel={n} grid=({g},1,1) block=({b},1,1) lds={l}\n"
    out += '.amdgcn_target "amdgcn-amd-amdhsa--gfx950"\n.text\n' + A.text()
    out += '.section .rodata,"a"\n'
    for k in ks: out += descriptor(k[0], k[1])
    return out

if __name__ == "__main__":
    dst = sys.argv[1] if len(sys.argv) > 1 else f"cdna_kernels/{NAME}.s"
    extra = int(sys.argv[2]) if len(sys.argv) > 2 else 0
    open(dst, "w").write(build(extra, len(sys.argv) > 3))
```

```python
import sys
from asmlib import *
import gen1
from gen1 import VM, header, descriptor, srd, f2u, NAME, OOB, GC0, GC1, EPS, add_profile
from gen1 import WQKV, WO, W1, W2, W3, W4, CS_W1, CS_W3, QF, KF, VF, OF, HF, GF, X1F, UF, SH, S1
G2 = 0x1D00000
WS_END = 0x1F00000
gen1.WS_END = WS_END
K = 1024
XR_ = 96 * K
P1B = 8 * K
CSL = 0
CF1 = K
CF3 = K + 512
PEX = 128 * K
INIT, ACC0, ACC1, ACT, HP, W = 8, 24, 40, 56, 120, 128
MAXTRY = 30000

def mfma(A, d, a_, b_, c): A(f"v_mfma_f32_32x32x16_bf16 {v(d,16)}, {v(a_,4)}, {v(b_,4)}, {c}")
def chk(A, r, n, first=False):
    for q in range(0, n, 2):
        A(f"v_max3_u32 v2, v{r+q}, v{r+q+1}, {'0' if first and q == 0 else 'v2'}")
def retry_if_sentinel(A, L, again):
    A(f"v_cmp_eq_u32 vcc, -1, v2\ns_cbranch_vccz {L}_ok")
    A(f"s_cmp_eq_u32 s34, 0\ns_cbranch_scc1 {L}_ok\ns_sub_u32 s34, s34, 1\ns_sleep 2\ns_branch {again}\n{L}_ok:")
def pack(A, src, dst, n=8):
    for q in range(n): A(f"v_cvt_pk_bf16_f32 v{dst+q}, v{src+2*q}, v{src+2*q+1}")
def unpack(A, src, dst, n=8):
    for q in range(n): A(f"v_lshlrev_b32 v{dst+2*q}, 16, v{src+q}\nv_and_b32 v{dst+2*q+1}, 0xffff0000, v{src+q}")

def load_w(A, vm, base, ks_total, tag):
    for s_ in range(16):
        if s_ and s_ % 4 == 0: A("s_add_u32 s40, s40, 4096\ns_add_u32 s41, s41, 4096")
        vm.issue(f"buffer_load_dwordx4 {v(W+4*s_,4)}, v1, s[8:11], s40 offen offset:{(s_%4)*K}", tag)
        vm.issue(f"buffer_load_dwordx4 {v(W+64+4*s_,4)}, v1, s[8:11], s41 offen offset:{(s_%4)*K}", tag)
def w_addr(A, base):
    A(f"s_lshl_b32 s40, s22, 15\ns_lshl_b32 s42, s21, 14\ns_add_u32 s40, s40, s42\ns_add_u32 s40, s40, {base:#x}\ns_xor_b32 s41, s40, 0x8000")
def load_w3(A, vm, tag):
    A(f"s_lshl_b32 s40, s25, 15\ns_add_u32 s40, s40, {W3:#x}\ns_cmp_lt_u32 s25, s26\ns_cselect_b32 s40, s40, {OOB:#x}")
    for s_ in range(32):
        if s_ and s_ % 4 == 0: A("s_add_u32 s40, s40, 4096")
        vm.issue(f"buffer_load_dwordx4 {v(W+4*s_,4)}, v1, s[8:11], s40 offen offset:{(s_%4)*K}", (tag, s_))

def stats_out(A, vm, D, T, sreg):
    A(f"v_pk_add_f32 {v(T,2)}, {v(D,2)}, {v(D+2,2)}\nv_pk_mul_f32 {v(T+2,2)}, {v(D,2)}, {v(D,2)}")
    A(f"v_pk_fma_f32 {v(T+2,2)}, {v(D+2,2)}, {v(D+2,2)}, {v(T+2,2)}")
    for k in range(4, 16, 2):
        A(f"v_pk_add_f32 {v(T,2)}, {v(T,2)}, {v(D+k,2)}\nv_pk_fma_f32 {v(T+2,2)}, {v(D+k,2)}, {v(D+k,2)}, {v(T+2,2)}")
    A(f"v_add_f32 v{T}, v{T}, v{T+1}\nv_add_f32 v{T+2}, v{T+2}, v{T+3}")
    A(f"v_permlane32_swap_b32 v{T}, v{T+2}\nv_add_f32 v{T}, v{T}, v{T+2}")
    vm.issue(f"buffer_store_dword v{T}, v6, s[8:11], {sreg} offen sc1", "st")
def stats_issue(A, vm, base, R):
    A(f"s_lshl_b32 s43, s20, 12\ns_add_u32 s43, s43, {base:#x}")
    for q in range(8): vm.issue(f"buffer_load_dwordx2 {v(R+2*q,2)}, v5, s[8:11], s43 offen offset:{q*512} sc1", "stats")
def stats_reduce(A, R):
    for q in (4, 2, 1):
        for k in range(q): A(f"v_pk_add_f32 {v(R+2*k,2)}, {v(R+2*k,2)}, {v(R+2*(k+q),2)}")
    A(f"v_mov_b32 v{R+2}, v{R}\nv_mov_b32 v{R+3}, v{R+1}")
    A(f"v_permlane32_swap_b32 v{R}, v{R+2}\nv_permlane32_swap_b32 v{R+1}, v{R+3}")
    A(f"v_add_f32 v{R}, v{R}, v{R+2}\nv_add_f32 v{R+1}, v{R+1}, v{R+3}")
    A(f"v_mul_f32 v{R}, {f2u(1/512):#x}, v{R}\nv_mul_f32 v{R+1}, {f2u(1/512):#x}, v{R+1}")
    A(f"v_fma_f32 v{R+1}, -v{R}, v{R}, v{R+1}\nv_max_f32 v{R+1}, 0, v{R+1}")
    A(f"v_add_f32 v{R+2}, {f2u(EPS):#x}, v{R+1}\nv_rsq_f32 v{R+2}, v{R+2}")
def gelu(A, d, t, n=16):
    for k in range(0, n, 2): A(f"v_pk_mul_f32 {v(t+k,2)}, {v(d+k,2)}, {v(d+k,2)}")
    for k in range(0, n, 2): A(f"v_pk_fma_f32 {v(t+k,2)}, {v(t+k,2)}, s[44:45], {v(GK,2)}")
    for k in range(0, n, 2): A(f"v_pk_mul_f32 {v(t+k,2)}, {v(t+k,2)}, {v(d+k,2)}")
    for k in range(n): A(f"v_exp_f32 v{t+k}, v{t+k}")
    for k in range(0, n, 2): A(f"v_pk_add_f32 {v(t+k,2)}, {v(t+k,2)}, 1.0 op_sel_hi:[1,0]")
    for k in range(n): A(f"v_rcp_f32 v{t+k}, v{t+k}")
    for k in range(0, n, 2): A(f"v_pk_mul_f32 {v(d+k,2)}, {v(d+k,2)}, {v(t+k,2)}")
GK = 118

def pair_stage(A, L, vm, src_base, va, init, extra_issue=None, extra_chk=None, wtag=None):
    A(f"{L}_again:")
    A(f"s_mov_b32 s42, {src_base}")
    for s_ in range(16):
        if s_ and s_ % 4 == 0: A("s_add_u32 s42, s42, 4096")
        vm.issue(f"buffer_load_dwordx4 {v(ACT+4*s_,4)}, {va[s_//8]}, s[8:11], s42 offen offset:{(s_%4)*K} sc1", ("a", s_))
    if extra_issue: extra_issue()
    for s_ in range(16):
        vm.wait(("a", s_))
        mfma(A, ACC1, W+64+4*s_, ACT+4*s_, "0" if s_ == 0 else v(ACC1, 16))
        mfma(A, ACC0, W+4*s_, ACT+4*s_, init if s_ == 0 else v(ACC0, 16))
        chk(A, ACT+4*s_, 4, s_ == 0)
    if extra_chk: extra_chk()
    retry_if_sentinel(A, L, f"{L}_again")
    for q in range(4): A(f"ds_write_b128 v7, {v(ACC1+4*q,4)} offset:{q*K}")
def pair_finish(A):
    A("v_xor_b32 v2, 0x1000, v7")
    for q in range(4): A(f"ds_read_b128 {v(ACC1+4*q,4)}, v2 offset:{q*K}")
def pair_sum(A):
    for q in range(0, 16, 2): A(f"v_pk_add_f32 {v(ACC0+q,2)}, {v(ACC0+q,2)}, {v(ACC1+q,2)}")

def w3_tile(A, vm, mt_sreg_lds, acc, wtag):
    RING = 8
    for s_ in range(RING): A(f"ds_read_b128 {v(ACT+4*s_,4)}, v2 offset:{s_*K}")
    for s_ in range(32):
        left = min(RING, 32 - s_) - 1
        if wtag: vm.wait((wtag, s_))
        A(f"s_waitcnt lgkmcnt({left})")
        mfma(A, acc, W+4*s_, ACT+4*(s_ % RING), "0" if s_ == 0 else v(acc, 16))
        if s_ + RING < 32: A(f"ds_read_b128 {v(ACT+4*(s_%RING),4)}, v2 offset:{(s_+RING)*K}")
def w3_epi(A, vm, acc, mt_reg, sdst):
    T = ACT; CSR = ACT + 32; P = ACT + 16
    A(f"s_lshl_b32 s42, {mt_reg}, 8\nv_lshl_add_u32 v2, v3, 2, s42")
    A(f"ds_read_b32 v{T}, v2 offset:{CF3}\nds_read_b32 v{T+2}, v2 offset:{CF3+128}\ns_waitcnt lgkmcnt(0)")
    for k in range(0, 16, 2): A(f"v_pk_mul_f32 {v(P+k,2)}, {v(CSR+k,2)}, {v(T+2,2)} op_sel_hi:[1,0]")
    for k in range(0, 16, 2): A(f"v_pk_fma_f32 {v(acc+k,2)}, {v(acc+k,2)}, {v(T,2)}, {v(P+k,2)} op_sel_hi:[1,0,1]")
    gelu(A, acc, T); pack(A, acc, P)
    vm.issue(f"buffer_store_dwordx4 {v(P,4)}, v1, s[8:11], {sdst} offen sc1", "st")
    vm.issue(f"buffer_store_dwordx4 {v(P+4,4)}, v1, s[8:11], {sdst} offen offset:1024 sc1", "st")
def cs_read(A, dst, sreg_off):
    A(f"v_lshl_add_u32 v2, v4, 4, {sreg_off}")
    for g in range(4): A(f"ds_read_b128 {v(dst+4*g,4)}, v2 offset:{CSL+32*g}")

def gen_main(A):
    name = "main_kernel"; header(A, name)
    A("s_cmp_ge_u32 s2, 256\ns_cbranch_scc1 M_done")
    A("s_load_dwordx2 s[4:5], s[0:1], 80\ns_load_dwordx2 s[6:7], s[0:1], 0\ns_load_dwordx2 s[36:37], s[0:1], 64")
    A("v_lshrrev_b32 v2, 6, v0\nv_and_b32 v1, 63, v0\nv_readfirstlane_b32 s3, v2\nv_and_b32 v3, 31, v0\nv_lshrrev_b32 v4, 5, v1\nv_lshlrev_b32 v1, 4, v1")
    Q=16; O=[24, 40]; S=[56, 72]; KR=[88, 92]; VR=[96, 104]; AK=5; AV=6; IDX=7; TM=112
    A("s_and_b32 s16, s2, 7      ; q block\ns_lshr_b32 s17, s2, 3      ; head")
    A("s_lshr_b32 s18, s17, 3\ns_lshl_b32 s19, s16, 2\ns_add_u32 s18, s18, s19      ; rb\ns_and_b32 s19, s17, 7      ; c")
    A("s_lshr_b32 s20, s3, 1\ns_and_b32 s23, s20, 1\ns_lshl_b32 s20, s18, 1\ns_add_u32 s20, s20, s23")
    A("s_and_b32 s21, s3, 1      ; kh\ns_lshl_b32 s22, s19, 1\ns_add_u32 s22, s22, s21")
    A("s_mul_i32 s24, s19, 5\ns_min_u32 s25, s19, 3\ns_add_u32 s24, s24, s25")
    A("s_add_u32 s26, s24, 5\ns_cmp_lt_u32 s19, 3\ns_addc_u32 s26, s26, 0")
    A("s_add_u32 s25, s23, 4\ns_cmp_lt_u32 s3, 4\ns_cselect_b32 s25, s3, s25\ns_lshl_b32 s27, s25, 7\ns_add_u32 s27, s27, 256\ns_add_u32 s25, s25, s24")
    A(f"s_mov_b32 s34, {MAXTRY}")
    A("s_lshl_b32 s28, s17, 16      ; head*64K")
    A("s_lshr_b32 s29, s3, 2\ns_lshl_b32 s29, s29, 15\ns_and_b32 s30, s3, 3\ns_lshl_b32 s31, s30, 10\ns_add_u32 s29, s29, s31\ns_add_u32 s29, s29, s28")
    A(f"s_add_u32 s38, s29, {KF:#x}\ns_add_u32 s39, s29, {VF:#x}\ns_lshl_b32 s31, s3, 10")
    A(f"s_lshl_b32 s35, s16, 3\ns_lshl_b32 s30, s30, 1\ns_add_u32 s35, s35, s30\ns_lshl_b32 s30, s35, 10\ns_add_u32 s30, s30, s28\ns_add_u32 s30, s30, {QF:#x}")
    A("s_waitcnt lgkmcnt(0)")
    srd(A, 8, 4, 5, WS_END); srd(A, 12, 6, 7, 2048 * 1024)
    A("; @stamp 0")
    vm = VM(A)
    vm.issue(f"buffer_load_dwordx4 {v(Q,4)}, v1, s[8:11], s30 offen", "c1")
    vm.issue(f"buffer_load_dwordx4 {v(Q+4,4)}, v1, s[8:11], s30 offen offset:1024", "c1")
    for c in range(8):
        A(f"s_add_u32 m0, s31, {c*16*K}")
        vm.issue("buffer_load_dwordx4 v1, s[8:11], s38 offen lds", "c1" if c < 2 else "c7")
        A(f"s_add_u32 m0, s31, {c*16*K + 8*K}")
        vm.issue("buffer_load_dwordx4 v1, s[8:11], s39 offen lds", "c1" if c < 2 else "c7")
        if c < 7: A("s_add_u32 s38, s38, 4096\ns_add_u32 s39, s39, 4096")
    A("s_mov_b32 s32, 0x0000ffff\ns_mov_b32 s33, 0x0000ffff")
    A(f"v_mov_b32 v{IDX}, 0xdddd")
    A(f"v_and_b32 v2, 27, v3\nv_cmp_eq_u32 vcc, 16, v2\nv_mov_b32 v2, 0x3f803f80\nv_cndmask_b32 v{VR[0]}, 0, v2, vcc")
    for r in range(1, 16): A(f"v_mov_b32 v{VR[0]+r}, v{VR[0]}")
    for r in range(32): A(f"v_mov_b32 v{O[0]+r}, 0")
    for r in range(8, 16): A(f"v_mov_b32 v{S[1]+r}, 0")
    A(f"s_lshr_b32 s29, s3, 2\ns_lshl_b32 s29, s29, 12\nv_add_u32 v{AK}, s29, v1")
    A(f"v_and_b32 v{AV}, 15, v3\nv_lshlrev_b32 v{AV}, 4, v{AV}\nv_lshl_add_u32 v{AV}, v4, 8, v{AV}\ns_add_u32 s29, s29, 8192\nv_add_u32 v{AV}, s29, v{AV}")
    vm.wait("c1")
    A("s_barrier")
    A("; @stamp 1")
    A(f"ds_read_b128 {v(KR[0],4)}, v{AK}\nds_read_b128 {v(KR[1],4)}, v{AK} offset:1024")
    A(f"s_mov_b64 exec, s[32:33]\nds_read_b128 {v(VR[0],4)}, v{AV}\nds_read_b128 {v(VR[0]+4,4)}, v{AV} offset:512\ns_mov_b64 exec, -1")
    A("s_waitcnt lgkmcnt(0)")
    mfma(A, S[0], KR[0], Q, "0")
    A("s_mov_b32 s29, 0")
    A.raw(".p2align 6")
    A("AT_loop:")
    off = lambda s_: (s_ // 4) * 16 * K + (s_ % 4) * K
    for t in range(4):
        for qi in range(2):
            Sc, Sn = S[qi], S[1 - qi]
            ex = lambda a_, b_: [A(f"v_exp_f32 v{Sc+i}, v{Sc+i}") for i in range(a_, b_)]
            vprev = VR[(t + 1) % 2] if qi == 0 else VR[t % 2]
            ex(0, 2)
            A(f"v_smfmac_f32_32x32x32_bf16 {v(O[1-qi],16)}, {v(vprev+4,4)}, {v(Sn+8,8)}, v{IDX}")
            if qi == 0:
                vn = VR[(t + 1) % 2]
                A(f"s_mov_b64 exec, s[32:33]\nds_read_b128 {v(vn,4)}, v{AV} offset:{off(t+1)}\nds_read_b128 {v(vn+4,4)}, v{AV} offset:{off(t+1)+512}\ns_mov_b64 exec, -1")
            ex(2, 6)
            if qi == 1: A("s_waitcnt lgkmcnt(1)")
            mfma(A, Sn, KR[t % 2] if qi == 0 else KR[(t + 1) % 2], Q + 4 * (1 - qi), "0")
            if qi == 0: A(f"ds_read_b128 {v(KR[t%2],4)}, v{AK} offset:{off(t+2)}")
            ex(6, 11)
            A(f"v_smfmac_f32_32x32x32_bf16 {v(O[qi],16)}, {v(VR[t%2],4)}, {v(Sc,8)}, v{IDX}")
            ex(11, 16)
    A(f"v_add_u32 v{AK}, 0x4000, v{AK}\nv_add_u32 v{AV}, 0x4000, v{AV}")
    A("s_add_u32 s29, s29, 1\ns_cmp_eq_u32 s29, 1\ns_cbranch_scc1 AT_x1\ns_cmp_eq_u32 s29, 6\ns_cbranch_scc1 AT_x2\ns_cmp_lg_u32 s29, 8\ns_cbranch_scc1 AT_loop\ns_branch AT_end")
    A("AT_x1:")
    A("s_waitcnt vmcnt(0)\ns_barrier")
    A(f"s_mov_b32 s43, {WO:#x}\ns_cmp_lt_u32 s3, 4\ns_cselect_b32 s43, s43, {W1:#x}")
    A("s_lshl_b32 s40, s22, 15\ns_lshl_b32 s42, s21, 14\ns_add_u32 s40, s40, s42\ns_add_u32 s40, s40, s43\ns_xor_b32 s41, s40, 0x8000")
    load_w(A, vm, 0, 32, "w")
    for r in range(4): A(f"v_mov_b32 v{TM+r}, -1")
    A("s_lshl_b32 s48, s20, 15\ns_lshl_b32 s42, s22, 11\ns_add_u32 s48, s48, s42\ns_lshr_b32 s49, s48, 3")
    A(f"s_mul_i32 s50, s18, {2*86*K}\ns_lshl_b32 s42, s25, 11\ns_add_u32 s50, s50, s42\ns_add_u32 s50, s50, {UF:#x}\ns_add_u32 s51, s50, {86*K}")
    A(f"s_cmp_lt_u32 s25, s26\ns_cselect_b32 s50, s50, {OOB:#x}\ns_cselect_b32 s51, s51, {OOB:#x}")
    A(f"s_add_u32 s52, s48, {HF:#x}\ns_add_u32 s53, s48, {X1F:#x}\ns_add_u32 s54, s48, {GF:#x}\ns_add_u32 s55, s49, {SH:#x}\ns_add_u32 s56, s49, {S1:#x}")
    A("s_cmp_lt_u32 s3, 4\ns_cbranch_scc0 AT_x1b")
    for sr in ("s52", "s53", "s50", "s51"):
        A(f"buffer_store_dwordx4 {v(TM,4)}, v1, s[8:11], {sr} offen sc1\nbuffer_store_dwordx4 {v(TM,4)}, v1, s[8:11], {sr} offen offset:1024 sc1")
    A(f"v_lshrrev_b32 v2, 2, v1\nbuffer_store_dword v{TM}, v2, s[8:11], s55 offen sc1\nbuffer_store_dword v{TM}, v2, s[8:11], s56 offen sc1")
    A("v_lshlrev_b32 v2, 10, v3\nv_lshl_add_u32 v2, v4, 3, v2\ns_lshl_b32 s42, s20, 15\ns_lshl_b32 s43, s22, 6\ns_add_u32 s42, s42, s43")
    for g in range(4): A(f"buffer_load_dwordx2 {v(HP+2*g,2)}, v2, s[12:15], s42 offen offset:{16*g}")
    A("s_branch AT_loop")
    A("AT_x1b:")
    A("s_cmp_eq_u32 s21, 0\ns_cselect_b32 s50, s50, s51")
    for sr in ("s54", "s50"):
        A(f"buffer_store_dwordx4 {v(TM,4)}, v1, s[8:11], {sr} offen sc1\nbuffer_store_dwordx4 {v(TM,4)}, v1, s[8:11], {sr} offen offset:1024 sc1")
    A("s_branch AT_loop")
    A("AT_x2:")
    A("s_barrier")
    A("s_lshr_b32 s42, s3, 1\ns_mul_i32 s43, s42, 22\ns_cmp_eq_u32 s42, 3\ns_subb_u32 s43, s43, 0      ; ks0(kq=w>>1)")
    A(f"s_mul_i32 s42, s22, 86\ns_add_u32 s42, s42, s43\ns_lshl_b32 s42, s42, 10\ns_add_u32 s42, s42, {W4:#x}\ns_mul_i32 s43, s3, {11*K}")
    for s_ in range(11):
        if s_ % 4 == 0:
            A(f"s_add_u32 m0, s43, {P1B + s_*K}")
            if s_: A("s_add_u32 s42, s42, 4096")
        A(f"buffer_load_dwordx4 v1, s[8:11], s42 offen offset:{(s_%4)*K} lds")
    A(f"s_lshl_b32 s42, s19, 8\ns_add_u32 s42, s42, {CS_W1:#x}\ns_lshl_b32 s43, s24, 7\ns_add_u32 s43, s43, {CS_W3-256:#x}")
    A(f"v_mov_b32 v2, s42\nv_mov_b32 v{TM}, s43\nv_cmp_gt_u32 vcc, 256, v1\nv_cndmask_b32 v2, v{TM}, v2, vcc\nv_add_u32 v2, v2, v1\ns_mov_b32 m0, {CSL}")
    A("buffer_load_dwordx4 v2, s[8:11], 0 offen lds")
    A("s_branch AT_loop")
    A("AT_end:")
    A(f"v_smfmac_f32_32x32x32_bf16 {v(O[1],16)}, {v(VR[1]+4,4)}, {v(S[1]+8,8)}, v{IDX}")
    A("; @stamp 2")
    A(f"s_xor_b32 s42, s3, 4\ns_mul_i32 s42, s42, 2304\ns_add_u32 s42, s42, {PEX}\nv_add_u32 v{AK}, s42, v1\nv_lshrrev_b32 v2, 2, v1\nv_add_u32 v{AV}, s42, v2")
    A("s_waitcnt lgkmcnt(0)")
    A("s_cmp_lt_u32 s3, 4\ns_cbranch_scc1 AT_e1")
    for r in range(9): A(f"v_mov_b32 v{S[0]+r}, v{O[0]+r}\nv_mov_b32 v{O[0]+r}, v{O[1]+r}\nv_mov_b32 v{O[1]+r}, v{S[0]+r}")
    for r in range(4): A(f"v_mov_b32 v{Q+r}, v{Q+4+r}")
    A("s_add_u32 s35, s35, 1")
    A("AT_e1:")
    A(f"ds_write_b128 v{AK}, {v(O[1],4)}\nds_write_b128 v{AK}, {v(O[1]+4,4)} offset:1024\nds_write_b32 v{AV}, v{O[1]+8} offset:2048")
    A(f"s_mul_i32 s42, s3, 2304\ns_add_u32 s42, s42, {PEX}\nv_add_u32 v{AK}, s42, v1\nv_add_u32 v{AV}, s42, v2")
    A("s_waitcnt vmcnt(0) lgkmcnt(0)\ns_barrier      ; b1")
    A(f"ds_read_b128 {v(O[1],4)}, v{AK}\nds_read_b128 {v(O[1]+4,4)}, v{AK} offset:1024\nds_read_b32 v{O[1]+8}, v{AV} offset:2048\ns_waitcnt lgkmcnt(0)")
    for r in range(0, 8, 2): A(f"v_pk_add_f32 {v(O[0]+r,2)}, {v(O[0]+r,2)}, {v(O[1]+r,2)}")
    A(f"v_add_f32 v{O[0]+8}, v{O[0]+8}, v{O[1]+8}")
    A(f"v_mul_f32 v{TM}, 0, v{O[0]}")
    for r in range(1, 8): A(f"v_fma_f32 v{TM}, v{O[0]+r}, 0, v{TM}")
    A(f"v_add_f32 v{TM}, v{TM}, v{O[0]+8}")
    A(f"v_cmp_ngt_f32 vcc, {f2u(2.0**100):#x}, v{TM}\ns_mov_b64 s[42:43], vcc\nv_cmp_nlt_f32 vcc, {f2u(2.0**-60):#x}, v{TM}\ns_or_b64 vcc, vcc, s[42:43]")
    A("s_cbranch_vccnz AT_slow")
    A("AT_fin:")
    A(f"v_rcp_f32 v{TM}, v{O[0]+8}")
    for r in range(0, 8, 2): A(f"v_pk_mul_f32 {v(O[0]+r,2)}, {v(O[0]+r,2)}, {v(TM,2)} op_sel_hi:[1,0]")
    pack(A, O[0], S[0], 4)
    A(f"s_lshl_b32 s42, s35, 15\ns_lshl_b32 s43, s17, 10\ns_add_u32 s42, s42, s43\ns_add_u32 s42, s42, {OF:#x}")
    A(f"buffer_store_dwordx4 {v(S[0],4)}, v1, s[8:11], s42 offen sc1")
    A(f"s_and_b32 s42, s3, 3\ns_xor_b32 s42, s42, 1\ns_lshl_b32 s42, s42, 12\ns_add_u32 s42, s42, {XR_}\nv_add_u32 v7, s42, v1")
    A("v_lshlrev_b32 v5, 3, v3\nv_lshl_add_u32 v6, v4, 2, v5\nv_lshl_add_u32 v5, v4, 8, v5")
    A(f"s_mov_b32 s44, {f2u(GC1):#x}\ns_mov_b32 s45, {f2u(GC1):#x}")
    A("s_lshl_b32 s57, s20, 15\ns_lshl_b32 s42, s21, 14\ns_add_u32 s57, s57, s42")
    A("s_cmp_lt_u32 s3, 4\ns_cbranch_scc0 B_start")
    unpack(A, HP, INIT)
    A(f"s_add_u32 s58, s57, {OF:#x}")
    A("s_waitcnt vmcnt(0)\ns_barrier      ; b2")
    A("; @stamp 3")
    vm = VM(A)
    pair_stage(A, "A1", vm, "s58", ["v1", "v1"], v(INIT, 16))
    A("s_waitcnt lgkmcnt(0)\ns_barrier      ; b3")
    pair_finish(A); w_addr(A, W2)
    A("s_waitcnt lgkmcnt(0)"); pair_sum(A)
    pack(A, ACC0, HP)
    vm.issue(f"buffer_store_dwordx4 {v(HP,4)}, v1, s[8:11], s52 offen sc1", "st")
    vm.issue(f"buffer_store_dwordx4 {v(HP+4,4)}, v1, s[8:11], s52 offen offset:1024 sc1", "st")
    stats_out(A, vm, ACC0, ACT, "s55")
    load_w(A, vm, W2, 32, "w")
    vm.wait("st")
    A("s_barrier      ; b4")
    A("; @stamp 4")
    SA = [116, 117]
    unpack(A, HP, INIT)
    A("s_barrier      ; b5")
    A(f"s_lshl_b32 s42, s23, 8\nv_lshl_add_u32 v2, v3, 2, s42\nds_read_b32 v{ACT}, v2 offset:{CF1}\nds_read_b32 v{ACT+2}, v2 offset:{CF1+128}\ns_waitcnt lgkmcnt(0)")
    for k in range(0, 16, 2): A(f"v_pk_fma_f32 {v(INIT+k,2)}, {v(INIT+k,2)}, {v(ACT,2)}, {v(ACT+2,2)} op_sel_hi:[1,0,0]")
    for g, dst in ((0, 0), (1, 5)):
        A("s_add_u32 s42, s21, 1\ns_lshl_b32 s43, s20, 5")
        A(("s_sub_u32" if g == 0 else "s_add_u32") + " s43, s43, s42")
        A(f"v_add_u32 v2, s43, v3\nv_lshrrev_b32 v{dst}, 5, v2\nv_lshlrev_b32 v{dst}, 15, v{dst}")
        A(f"v_and_b32 v{ACT}, 31, v2\nv_lshl_add_u32 v{ACT}, v4, 5, v{ACT}\nv_lshl_add_u32 v{dst}, v{ACT}, 4, v{dst}")
        A(f"v_lshrrev_b32 v{ACT}, 6, v2\nv_add_u32 v{ACT+1}, {G2-GF:#x}, v{dst}\nv_cmp_eq_u32 vcc, s18, v{ACT}\nv_cndmask_b32 v{dst}, v{ACT+1}, v{dst}, vcc")
        A(f"v_mov_b32 v{ACT}, {OOB:#x}\nv_cmp_gt_u32 vcc, 2048, v2\nv_cndmask_b32 v{dst}, v{ACT}, v{dst}, vcc")
    A(f"s_lshl_b32 s58, s21, 14\ns_add_u32 s58, s58, {GF:#x}")
    A("s_barrier      ; b6")
    A("; @stamp 5")
    pair_stage(A, "A2", vm, "s58", ["v0", "v5"], v(INIT, 16))
    A("s_waitcnt lgkmcnt(0)\ns_barrier      ; b7")
    pair_finish(A)
    A("s_waitcnt lgkmcnt(0)"); pair_sum(A)
    pack(A, ACC0, ACC1)
    vm.issue(f"buffer_store_dwordx4 {v(ACC1,4)}, v1, s[8:11], s53 offen sc1", "st")
    vm.issue(f"buffer_store_dwordx4 {v(ACC1+4,4)}, v1, s[8:11], s53 offen offset:1024 sc1", "st")
    stats_out(A, vm, ACC0, ACT, "s56")
    load_w3(A, vm, "w3")
    vm.wait("st")
    A("s_barrier      ; b8")
    A("; @stamp 6")
    unpack(A, HP, INIT)
    for k in range(0, 16, 2): A(f"v_pk_add_f32 {v(INIT+k,2)}, {v(INIT+k,2)}, {v(ACC0+k,2)}")
    A(f"v_mov_b32 v{GK}, {f2u(GC0):#x}\nv_mov_b32 v{GK+1}, {f2u(GC0):#x}")
    cs_read(A, ACT + 32, "s27")
    A("s_barrier      ; b9")
    A(f"v_add_u32 v2, {XR_}, v1")
    w3_tile(A, vm, None, ACC0, "w3")
    w3_epi(A, vm, ACC0, "0", "s50")
    A(f"v_add_u32 v2, {XR_+32*K}, v1")
    w3_tile(A, vm, None, ACC0, None)
    A("s_barrier      ; b10")
    w3_epi(A, vm, ACC0, "1", "s51")
    A("s_branch W4_start")
    A("B_start:")
    A(f"s_add_u32 s58, s57, {HF:#x}")
    A("s_waitcnt vmcnt(0)\ns_barrier      ; b2\ns_barrier      ; b3\ns_barrier      ; b4")
    A("; @stamp 4")
    vm = VM(A)
    ST = INIT
    def xchk():
        vm.wait("stats"); chk(A, ST, 16)
    pair_stage(A, "B1", vm, "s58", ["v1", "v1"], "0", lambda: stats_issue(A, vm, SH, ST), xchk)
    A("s_lshl_b32 s42, s21, 7")
    cs_read(A, ACT + 32, "s42")
    stats_reduce(A, ST)
    A(f"v_mul_f32 v{ST+4}, v{ST}, v{ST+2}\nv_sub_f32 v{ST+4}, 0, v{ST+4}")
    A(f"s_lshl_b32 s42, s23, 8\nv_lshl_add_u32 v2, v3, 2, s42\nds_write_b32 v2, v{ST+2} offset:{CF1}\nds_write_b32 v2, v{ST+4} offset:{CF1+128}")
    A(f"v_mul_f32 v{ST+6}, v{ST+2}, v{ST+2}\nv_mul_f32 v{ST+6}, v{ST+6}, v{ST+1}\nv_add_f32 v{ST+6}, {f2u(EPS):#x}, v{ST+6}\nv_rsq_f32 v{ST+6}, v{ST+6}")
    A(f"v_mul_f32 v{ST+2}, v{ST+2}, v{ST+6}\nv_mul_f32 v{ST+4}, v{ST+4}, v{ST+6}")
    A(f"v_mov_b32 v{GK}, {f2u(GC0):#x}\nv_mov_b32 v{GK+1}, {f2u(GC0):#x}")
    A("s_waitcnt lgkmcnt(0)\ns_barrier      ; b5")
    pair_finish(A)
    for k in range(0, 16, 2): A(f"v_pk_mul_f32 {v(ACT+32+k,2)}, {v(ACT+32+k,2)}, {v(ST+4,2)} op_sel_hi:[1,0]")
    A("s_waitcnt lgkmcnt(0)"); pair_sum(A)
    for k in range(0, 16, 2): A(f"v_pk_fma_f32 {v(ACC0+k,2)}, {v(ACC0+k,2)}, {v(ST+2,2)}, {v(ACT+32+k,2)} op_sel_hi:[1,0,1]")
    gelu(A, ACC0, ACT); pack(A, ACC0, ACC1)
    vm.issue(f"buffer_store_dwordx4 {v(ACC1,4)}, v1, s[8:11], s54 offen sc1", "st")
    vm.issue(f"buffer_store_dwordx4 {v(ACC1+4,4)}, v1, s[8:11], s54 offen offset:1024 sc1", "st")
    A(f"s_lshr_b32 s42, s19, 1\ns_and_b32 s42, s42, 1\ns_add_u32 s43, s54, {G2-GF:#x}\ns_cmp_lg_u32 s42, s23\ns_cselect_b32 s43, s43, {OOB:#x}")
    A("s_cmp_eq_u32 s23, 0\ns_cselect_b32 s46, 3, 0xc0000000\ns_mov_b32 s47, s46\ns_mov_b64 exec, s[46:47]")
    vm.issue(f"buffer_store_dwordx4 {v(ACC1,4)}, v1, s[8:11], s43 offen sc1", "st")
    vm.issue(f"buffer_store_dwordx4 {v(ACC1+4,4)}, v1, s[8:11], s43 offen offset:1024 sc1", "st")
    A("s_mov_b64 exec, -1")
    load_w3(A, vm, "w3")
    vm.wait("st")
    A("s_barrier      ; b6\ns_barrier      ; b7")
    A(f"s_add_u32 s58, s57, {X1F:#x}\ns_and_b32 s42, s3, 3\ns_lshl_b32 s42, s42, 14\ns_add_u32 s42, s42, {XR_}\nv_add_u32 v0, s42, v1")
    A("s_barrier      ; b8")
    A("; @stamp 6")
    A("B3_again:")
    A("s_mov_b32 s42, s58")
    for s_ in range(16):
        if s_ and s_ % 4 == 0: A("s_add_u32 s42, s42, 4096")
        vm.issue(f"buffer_load_dwordx4 {v(ACT+4*s_,4)}, v1, s[8:11], s42 offen offset:{(s_%4)*K} sc1", ("a", s_))
    stats_issue(A, vm, S1, ST)
    for s_ in range(16):
        vm.wait(("a", s_))
        A(f"ds_write_b128 v0, {v(ACT+4*s_,4)} offset:{s_*K}")
        chk(A, ACT+4*s_, 4, s_ == 0)
    vm.wait("stats"); chk(A, ST, 16)
    retry_if_sentinel(A, "B3", "B3_again")
    stats_reduce(A, ST)
    A(f"v_mul_f32 v{ST+4}, v{ST}, v{ST+2}\nv_sub_f32 v{ST+4}, 0, v{ST+4}")
    A(f"s_lshl_b32 s42, s23, 8\nv_lshl_add_u32 v2, v3, 2, s42\nds_write_b32 v2, v{ST+2} offset:{CF3}\nds_write_b32 v2, v{ST+4} offset:{CF3+128}")
    A("s_waitcnt lgkmcnt(0)\ns_barrier      ; b9")
    A("; @stamp 7")
    A(f"v_mov_b32 v{GK}, {f2u(GC0):#x}\nv_mov_b32 v{GK+1}, {f2u(GC0):#x}")
    for r in range(16): A(f"v_mov_b32 v{INIT+r}, 0")
    A("s_cmp_lt_u32 s25, s26\ns_cbranch_scc0 B3_skip")
    cs_read(A, ACT + 32, "s27")
    A(f"s_lshl_b32 s42, s21, 15\ns_add_u32 s42, s42, {XR_}\nv_add_u32 v2, s42, v1")
    w3_tile(A, vm, None, ACC0, None)
    w3_epi(A, vm, ACC0, "s21", "s50")
    A("B3_skip:")
    A("s_barrier      ; b10")
    A("s_and_b32 s42, s3, 3\ns_mul_i32 s43, s42, 22\ns_cmp_eq_u32 s42, 3\ns_subb_u32 s43, s43, 0")
    A(f"s_mul_i32 s40, s19, 172\ns_add_u32 s40, s40, s43\ns_lshl_b32 s40, s40, 10\ns_add_u32 s40, s40, {W4+11*K:#x}\ns_lshl_b32 s42, s42, 14\ns_add_u32 s42, s42, {XR_}")
    for nt in range(2):
        for s_ in range(8):
            if s_ % 4 == 0:
                A(f"s_add_u32 m0, s42, {nt*8*K + s_*K}\ns_add_u32 s41, s40, {nt*86*K + s_*K}")
            A(f"buffer_load_dwordx4 v1, s[8:11], s41 offen offset:{(s_%4)*K} lds")
    A("W4_start:")
    vm = VM(A)
    U_, WR, RG = 128, 216, ACT
    A("s_lshr_b32 s42, s3, 2\ns_lshl_b32 s43, s42, 1\ns_add_u32 s59, s43, s21      ; kq\ns_lshl_b32 s42, s42, 8\nv_xor_b32 v0, s42, v1      ; lane' * 16")
    A("s_mul_i32 s43, s59, 22\ns_cmp_eq_u32 s59, 3\ns_subb_u32 s43, s43, 0      ; ks0")
    A(f"s_mul_i32 s40, s22, 86\ns_add_u32 s40, s40, s43\ns_lshl_b32 s40, s40, 10\ns_add_u32 s40, s40, {W4+19*K:#x}")
    A(f"s_xor_b32 s41, s22, 1\ns_mul_i32 s41, s41, 86\ns_add_u32 s41, s41, s43\ns_lshl_b32 s41, s41, 10\ns_add_u32 s41, s41, {W4+19*K:#x}")
    A(f"s_cmp_lt_u32 s59, 2\ns_cselect_b32 s46, s40, {OOB:#x}\ns_cselect_b32 s47, s41, {OOB:#x}")
    A("s_waitcnt vmcnt(0)")
    for s_ in range(3):
        vm.issue(f"buffer_load_dwordx4 {v(WR+8*s_,4)}, v0, s[8:11], {'s40' if s_ < 2 else 's46'} offen offset:{s_*K}", "wr")
        vm.issue(f"buffer_load_dwordx4 {v(WR+8*s_+4,4)}, v0, s[8:11], {'s41' if s_ < 2 else 's47'} offen offset:{s_*K}", "wr")
    A(f"s_mul_i32 s58, s20, 86\ns_add_u32 s58, s58, s43\ns_lshl_b32 s58, s58, 10\ns_add_u32 s58, s58, {UF:#x}")
    A(f"s_add_u32 s60, s58, {20*K}\ns_cmp_lt_u32 s59, 2\ns_cselect_b32 s60, s60, {OOB:#x}")
    A(f"s_lshl_b32 s42, s59, 1\ns_add_u32 s42, s42, s21\ns_mul_i32 s43, s42, {11*K}\nv_add_u32 v5, s43, v0\ns_lshl_b32 s43, s42, 13\ns_add_u32 s43, s43, {XR_}\nv_add_u32 v7, s43, v0")
    A(f"s_xor_b32 s42, s42, 1\ns_mul_i32 s43, s42, {11*K}\nv_add_u32 v6, s43, v0\nv_xor_b32 v116, 0x2000, v7")
    srd(A, 12, 36, 37, 2048 * 1024)
    A("s_barrier      ; b11")
    A("; @stamp 8")
    A("W4_again:")
    A("s_mov_b32 s42, s58")
    for s_ in range(22):
        if s_ and s_ % 4 == 0: A("s_add_u32 s42, s42, 4096")
        vm.issue(f"buffer_load_dwordx4 {v(U_+4*s_,4)}, v1, s[8:11], {'s42' if s_ < 21 else 's60'} offen offset:{(s_%4)*K} sc1", ("a", s_))
    RS = 6
    def wread(s_):
        r = RG + 8 * (s_ % RS)
        a0, a1, o = ("v5", "v6", P1B + s_ * K) if s_ < 11 else ("v7", "v116", (s_ - 11) * K)
        A(f"ds_read_b128 {v(r,4)}, {a0} offset:{o}\nds_read_b128 {v(r+4,4)}, {a1} offset:{o}")
    for s_ in range(RS): wread(s_)
    for s_ in range(22):
        vm.wait(("a", s_))
        if s_ < 19:
            A(f"s_waitcnt lgkmcnt({2 * (min(RS, 19 - s_) - 1)})"); r = RG + 8 * (s_ % RS)
        else: r = WR + 8 * (s_ - 19)
        mfma(A, ACC1, r + 4, U_ + 4 * s_, "0" if s_ == 0 else v(ACC1, 16))
        mfma(A, ACC0, r, U_ + 4 * s_, v(INIT, 16) if s_ == 0 else v(ACC0, 16))
        if s_ + RS < 19: wread(s_ + RS)
        chk(A, U_ + 4 * s_, 4, s_ == 0)
    retry_if_sentinel(A, "W4", "W4_again")
    for n_, x in enumerate((4, 1, 5)):
        A(f"s_xor_b32 s42, s3, {x}\ns_mul_i32 s42, s42, {6*K}\ns_add_u32 s42, s42, {n_*2*K}\nv_add_u32 v{5+n_}, s42, v1")
    A("s_barrier      ; b12")
    for n_, r in enumerate((ACC0 + 8, ACC1, ACC1 + 8)):
        A(f"ds_write_b128 v{5+n_}, {v(r,4)}\nds_write_b128 v{5+n_}, {v(r+4,4)} offset:1024")
    A(f"s_mul_i32 s42, s3, {6*K}\nv_add_u32 v5, s42, v1")
    A("v_lshlrev_b32 v6, 10, v3\nv_lshl_add_u32 v6, v4, 4, v6\ns_lshl_b32 s42, s20, 15\ns_lshl_b32 s43, s22, 6\ns_add_u32 s42, s42, s43\ns_lshr_b32 s43, s3, 2\ns_lshl_b32 s43, s43, 5\ns_add_u32 s42, s42, s43")
    A("s_waitcnt lgkmcnt(0)\ns_barrier      ; b13")
    for q in range(6): A(f"ds_read_b128 {v(ACT+4*q,4)}, v5 offset:{q*K}")
    for n_ in range(3):
        A(f"s_waitcnt lgkmcnt({4-2*n_})")
        for k in range(0, 8, 2): A(f"v_pk_add_f32 {v(ACC0+k,2)}, {v(ACC0+k,2)}, {v(ACT+8*n_+k,2)}")
    pack(A, ACC0, ACC1, 4)
    A(f"v_permlane32_swap_b32 v{ACC1}, v{ACC1+2}\nv_permlane32_swap_b32 v{ACC1+1}, v{ACC1+3}")
    A(f"buffer_store_dwordx4 {v(ACC1,4)}, v6, s[12:15], s42 offen")
    A("; @stamp 9")
    if PROFILE: A("v_lshlrev_b32 v0, 6, s3\ns_sub_u32 s64, %d, s34" % (MAXTRY + 1))
    A("M_done:\ns_endpgm")
    A("AT_slow:")
    A(f"s_add_u32 s38, s28, {KF:#x}\ns_mov_b32 s29, 64\nv_mov_b32 v{TM}, 0xff7fffff")
    A("AS_max:")
    A(f"buffer_load_dwordx4 {v(KR[0],4)}, v1, s[8:11], s38 offen\ns_add_u32 s38, s38, 1024\ns_waitcnt vmcnt(0)")
    mfma(A, S[0], KR[0], Q, "0")
    for r in range(0, 16, 2): A(f"v_max3_f32 v{TM}, v{S[0]+r}, v{S[0]+r+1}, v{TM}")
    A("s_sub_u32 s29, s29, 1\ns_cmp_lg_u32 s29, 0\ns_cbranch_scc1 AS_max")
    A(f"v_mov_b32 v{TM+1}, v{TM}\nv_permlane32_swap_b32 v{TM}, v{TM+1}\nv_max_f32 v{TM}, v{TM}, v{TM+1}")
    for r in range(16): A(f"v_mov_b32 v{O[0]+r}, 0")
    A(f"s_add_u32 s38, s28, {KF:#x}\ns_add_u32 s39, s28, {VF:#x}\ns_mov_b32 s29, 64")
    A(f"v_and_b32 v{AV}, 15, v3\nv_lshlrev_b32 v{AV}, 4, v{AV}\nv_lshl_add_u32 v{AV}, v4, 8, v{AV}")
    A("AS_pv:")
    A(f"buffer_load_dwordx4 {v(KR[0],4)}, v1, s[8:11], s38 offen")
    A(f"s_mov_b64 exec, s[32:33]\nbuffer_load_dwordx4 {v(VR[0],4)}, v{AV}, s[8:11], s39 offen\nbuffer_load_dwordx4 {v(VR[0]+4,4)}, v{AV}, s[8:11], s39 offen offset:512\ns_mov_b64 exec, -1")
    A("s_add_u32 s38, s38, 1024\ns_add_u32 s39, s39, 1024\ns_waitcnt vmcnt(0)")
    mfma(A, S[0], KR[0], Q, "0")
    for r in range(16): A(f"v_sub_f32 v{S[0]+r}, v{S[0]+r}, v{TM}")
    for r in range(16): A(f"v_exp_f32 v{S[0]+r}, v{S[0]+r}")
    A(f"v_smfmac_f32_32x32x32_bf16 {v(O[0],16)}, {v(VR[0],4)}, {v(S[0],8)}, v{IDX}")
    A(f"v_smfmac_f32_32x32x32_bf16 {v(O[0],16)}, {v(VR[0]+4,4)}, {v(S[0]+8,8)}, v{IDX}")
    A("s_sub_u32 s29, s29, 1\ns_cmp_lg_u32 s29, 0\ns_cbranch_scc1 AS_pv")
    A("s_branch AT_fin")
    return name, 256

PROFILE = False
def prep_clears(A):
    A(f"s_lshl_b32 s23, s21, 15\ns_lshl_b32 s24, s22, 11\ns_add_u32 s23, s23, s24\ns_add_u32 s24, s23, {OF:#x}\ns_add_u32 s23, s23, {G2:#x}")
    for r in range(4): A(f"v_mov_b32 v{40+r}, -1")
    A("buffer_store_dwordx4 v[40:43], v1, s[8:11], s24 offen\nbuffer_store_dwordx4 v[40:43], v1, s[8:11], s24 offen offset:1024")
    A("s_mov_b32 s26, 0xc0000003\ns_mov_b32 s27, 0xc0000003\ns_mov_b64 exec, s[26:27]")
    A("buffer_store_dwordx4 v[40:43], v1, s[8:11], s23 offen\nbuffer_store_dwordx4 v[40:43], v1, s[8:11], s23 offen offset:1024")

def build(profile=False):
    global PROFILE
    PROFILE = profile
    A = Asm(); ks = []
    gen1.PREP_HOOK = prep_clears
    ks.append(gen1.gen_prep(A) + (310, 512, 4096))
    ks.append(gen1.gen_gemm(A, "qkv_kernel", "G1", gen1.XF, 32, WQKV, 48, gen1.epi_qkv, vform_from=16) + (32*24, 256, 65536 + 1024))
    ks.append(gen_main(A) + (256, 512, 160 * K))
    if profile: A = add_profile(A)
    A.finalize()
    out = "; generated by dev/gen2.py\n"
    for n, _, g, b, l in ks: out += f"; @launch kernel={n} grid=({g},1,1) block=({b},1,1) lds={l}\n"
    out += '.amdgcn_target "amdgcn-amd-amdhsa--gfx950"\n.text\n' + A.text() + '.section .rodata,"a"\n'
    for k in ks: out += descriptor(k[0], k[1])
    return out
if __name__ == "__main__":
    dst = sys.argv[1] if len(sys.argv) > 1 else f"cdna_kernels/{NAME}.s"
    open(dst, "w").write(build(len(sys.argv) > 2))
```
